```python
import torch

def _softmax(x, axis=-1):
    return torch.softmax(x, dim=axis)
def _gelu(x):
    return torch.nn.functional.gelu(x, approximate="tanh")
def _silu(x):
    return torch.nn.functional.silu(x)
def _sigmoid(x):
    return torch.sigmoid(x)
def _layernorm(x, axis=-1, eps=1e-5):
    m = x.mean(dim=axis, keepdim=True)
    v = x.var(dim=axis, keepdim=True, unbiased=False)
    return (x - m) / torch.sqrt(v + eps)
def _scatter_add(tgt, idx, src, axis=0):
    return tgt.clone().index_add_(axis, idx, src)
def _segment_sum(src, seg, n):
    out = torch.zeros((n,) + src.shape[1:], dtype=src.dtype)
    return out.index_add_(0, seg, src)
def _pad(x, pw):
    flat = tuple(v for pair in reversed(pw) for v in pair)
    return torch.nn.functional.pad(x, flat)

kernel_name = 'interleave_layers__softmax_full_mha__dense_activation_gelu__prompt'

def setup_inputs():

    _w = (lambda a: (lambda t: t.to(torch.bfloat16) if t.is_floating_point() else t)(torch.as_tensor(a)))
    def _A_setup():
        B, S, D = 1, 2048, 512
        return {
            "x": _w((lambda *s: torch.randn(*s, dtype=torch.bfloat16) * 0.05)(B, S, D)),
            "wqkv": _w((lambda *s: torch.randn(*s, dtype=torch.bfloat16) * 0.05)(D, 3 * D)),
            "wo": _w((lambda *s: torch.randn(*s, dtype=torch.bfloat16) * 0.05)(D, D)),
        }
    _A_in = _A_setup()

    def _B_setup():
        B, S, D, F = 1, 2048, 512, 1792
        return {
            "x": _w((lambda *s: torch.randn(*s, dtype=torch.bfloat16) * 0.05)(B, S, D)),
            "w1": _w((lambda *s: torch.randn(*s, dtype=torch.bfloat16) * 0.8)(D, F) * (D ** -0.5)),
            "b1": _w((lambda *s: torch.randn(*s, dtype=torch.bfloat16) * 0.2)(F) * 0.01),
            "w2": _w((lambda *s: torch.randn(*s, dtype=torch.bfloat16) * 0.2)(F, D) * (F ** -0.5)),
            "b2": _w((lambda *s: torch.randn(*s, dtype=torch.bfloat16) * 0.2)(D) * 0.01),
        }
    _B_in = _B_setup()

    return {
        "A_x": _A_in["x"],
        "A_wqkv": _A_in["wqkv"],
        "A_wo": _A_in["wo"],
        "B_x": _B_in["x"],
        "B_w1": _B_in["w1"],
        "B_b1": _B_in["b1"],
        "B_w2": _B_in["w2"],
        "B_b2": _B_in["b2"],
    }

def reference(A_x, A_wqkv, A_wo, B_x, B_w1, B_b1, B_w2, B_b2):
    def _A_ref(x, wqkv, wo):
        B, S, D = x.shape
        H = 32; Dh = D // H
        qkv = (lambda x, *d: x.permute(*d))((x @ wqkv).reshape(B, S, 3, H, Dh), 2, 0, 3, 1, 4)
        q, k, v = qkv[0], qkv[1], qkv[2]
        scale = Dh ** -0.5
        scores = torch.einsum("bhqd,bhkd->bhqk", q, k) * scale
        p = _softmax(scores, axis=-1)
        o = torch.einsum("bhqk,bhkd->bhqd", p, v)
        return (lambda x, *d: x.permute(*d))(o, 0, 2, 1, 3).reshape(B, S, D) @ wo

    def _B_ref(x, w1, b1, w2, b2):
        h = torch.einsum("bsd,df->bsf", x, w1) + b1
        h = _gelu(h)
        return torch.einsum("bsf,fd->bsd", h, w2) + b2

    x = A_x
    x = x + _A_ref(_layernorm(x, axis=-1), A_wqkv, A_wo)
    x = x + _B_ref(_layernorm(x, axis=-1), B_w1, B_b1, B_w2, B_b2)
    x = x + _A_ref(_layernorm(x, axis=-1), A_wqkv, A_wo)
    x = x + _B_ref(_layernorm(x, axis=-1), B_w1, B_b1, B_w2, B_b2)
    return x
```

```python
import struct, sys

NAME = "interleave_layers__softmax_full_mha__dense_activation_gelu__prompt"
S, D, H, DH, F = 2048, 512, 32, 16, 1792

MB = 1 << 20
WS_Q, WS_K, WS_V, WS_O, WS_X1, WS_H, WS_X2, WS_X3 = 0, 2 * MB, 4 * MB, 6 * MB, 8 * MB, 10 * MB, 18 * MB, 20 * MB

P_AX, P_WQKV, P_WO, P_BX, P_W1, P_B1, P_W2, P_B2, P_OUT, P_DBG, P_WS = 4, 6, 8, 10, 12, 14, 16, 18, 20, 22, 24


def f32bits(x):
    return struct.unpack("<I", struct.pack("<f", x))[0]


def hx(x):
    return "0x%08x" % (x & 0xFFFFFFFF)


class K:
    def __init__(self, name, nvgpr, nsgpr=96):
        self.name = name
        self.lines = []
        self.nvgpr = nvgpr
        self.nsgpr = nsgpr
        self.lab = 0

    def e(self, s):
        self.lines.append("    " + s)

    def c(self, s):
        self.lines.append("    ; " + s)

    def label(self, l):
        self.lines.append(l + ":")

    def newlabel(self, stem):
        self.lab += 1
        return "L_%s_%s_%d" % (self.name, stem, self.lab)

    def prologue(self, nwg):
        self.lines.append(".globl %s" % self.name)
        self.lines.append(".p2align 8")
        self.lines.append(".type %s,@function" % self.name)
        self.lines.append("%s:" % self.name)
        self.e("s_cmp_ge_u32 s2, %d" % nwg)
        self.e("s_cbranch_scc1 L_%s_end" % self.name)
        self.e("s_load_dwordx16 s[4:19], s[0:1], 0")
        self.e("s_load_dwordx4 s[20:23], s[0:1], 64")
        self.e("s_load_dwordx2 s[24:25], s[0:1], 80")

    def srd(self, dst, ptr, off, size):
        if off:
            self.e("s_add_u32 s%d, s%d, %s" % (dst, ptr, hx(off)))
            self.e("s_addc_u32 s%d, s%d, 0" % (dst + 1, ptr + 1))
            self.e("s_and_b32 s%d, s%d, 0xffff" % (dst + 1, dst + 1))
        else:
            self.e("s_mov_b32 s%d, s%d" % (dst, ptr))
            self.e("s_and_b32 s%d, s%d, 0xffff" % (dst + 1, ptr + 1))
        self.e("s_mov_b32 s%d, %s" % (dst + 2, hx(size)))
        self.e("s_mov_b32 s%d, 0x00020000" % (dst + 3))

    def end(self):
        self.label("L_%s_end" % self.name)
        self.e("s_endpgm")

    def desc(self):
        acc = (self.nvgpr + 3) // 4 * 4
        return "\n".join([
            ".amdhsa_kernel %s" % self.name,
            "  .amdhsa_next_free_vgpr %d" % self.nvgpr,
            "  .amdhsa_next_free_sgpr %d" % self.nsgpr,
            "  .amdhsa_accum_offset %d" % acc,
            "  .amdhsa_group_segment_fixed_size 0",
            "  .amdhsa_kernarg_size 88",
            "  .amdhsa_user_sgpr_count 2",
            "  .amdhsa_user_sgpr_kernarg_segment_ptr 1",
            "  .amdhsa_system_sgpr_workgroup_id_x 1",
            ".end_amdhsa_kernel",
        ])


def vr(a, n=1):
    return "v%d" % a if n == 1 else "v[%d:%d]" % (a, a + n - 1)


def sr(a, n=1):
    return "s%d" % a if n == 1 else "s[%d:%d]" % (a, a + n - 1)


def src_srd(k, dst, src, size):
    if src[0] == 'arg':
        k.srd(dst, src[1], 0, size)
    else:
        k.srd(dst, P_WS, src[1], size)


def round_bf16_to_f32(k, dst_lo, dst_hi, a, b, tmp):
    k.e("v_cvt_pk_bf16_f32 %s, %s, %s" % (vr(tmp), vr(a), vr(b)))
    k.e("v_lshlrev_b32 %s, 16, %s" % (vr(dst_lo), vr(tmp)))
    k.e("v_and_b32 %s, 0xffff0000, %s" % (vr(dst_hi), vr(tmp)))


def lngemm(name, xsrc, wptr, N, kind):
    NCB = N // 256
    NWG = 32 * NCB
    WST = N * 2
    k = K(name, 256)
    k.prologue(NWG)
    SX, SW, SO, SB = 28, 32, 36, 40
    s_rb, s_cb, s_w, s_t, s_wbase, s_m0w, s_t2, s_scale, s_obase = 48, 49, 50, 51, 52, 53, 54, 55, 56
    WBUF = 65536
    magic = (1 << 32) // NCB + 1
    k.e("s_mov_b32 s%d, %s" % (s_t, hx(magic)))
    k.e("s_mul_hi_u32 s%d, s2, s%d" % (s_rb, s_t))
    k.e("s_mul_i32 s%d, s%d, %d" % (s_t, s_rb, NCB))
    k.e("s_sub_u32 s%d, s2, s%d" % (s_cb, s_t))
    k.e("v_lshrrev_b32 v2, 6, v0")
    k.e("v_and_b32 v1, 63, v0")
    k.e("s_nop 0")
    k.e("v_readfirstlane_b32 s%d, v2" % s_w)
    k.e("s_waitcnt lgkmcnt(0)")
    src_srd(k, SX, xsrc, S * D * 2)
    k.srd(SW, wptr, 0, D * N * 2)
    k.e("v_lshrrev_b32 v5, 5, v1")
    k.e("v_and_b32 v6, 31, v1")
    k.e("v_lshrrev_b32 v7, 2, v6")
    k.e("v_and_b32 v8, 3, v6")
    k.e("v_xor_b32 v9, v7, v5")
    k.e("v_lshlrev_b32 v9, 6, v9")
    k.e("v_lshl_add_u32 v9, v8, 4, v9")
    k.e("v_xor_b32 v10, 2, v5")
    k.e("v_xor_b32 v10, v7, v10")
    k.e("v_lshlrev_b32 v10, 6, v10")
    k.e("v_lshl_add_u32 v10, v8, 4, v10")
    k.e("s_mov_b32 s%d, %d" % (s_t, WST))
    k.e("v_mul_lo_u32 v11, v5, s%d" % s_t)
    k.e("s_lshl_b32 s%d, s%d, 9" % (s_t, s_cb))
    k.e("v_add3_u32 v3, v9, v11, s%d" % s_t)
    k.e("v_add3_u32 v4, v10, v11, s%d" % s_t)
    k.e("s_mul_i32 s%d, s%d, %d" % (s_wbase, s_w, 16 * WST))
    k.e("s_lshl_b32 s%d, s%d, 13" % (s_m0w, s_w))
    k.e("s_add_u32 s%d, s%d, %d" % (s_m0w, s_m0w, WBUF))

    def wdma(kc):
        for i in range(8):
            k.e("s_add_u32 m0, s%d, %d" % (s_m0w, (kc & 1) * 32768 + i * 1024))
            k.e("s_add_u32 s%d, s%d, %d" % (s_t, s_wbase, (kc * 64 + 2 * i) * WST))
            k.e("buffer_load_dwordx4 %s, %s, s%d offen lds" % (vr(3 + (i & 1)), sr(SW, 4), s_t))

    wdma(0)
    XR = 192
    FR = 64
    k.e("v_lshrrev_b32 v12, 2, v1")
    k.e("v_and_b32 v13, 3, v1")
    k.e("s_lshl_b32 s%d, s%d, 4" % (s_t, s_w))
    k.e("v_add_u32 v12, s%d, v12" % s_t)
    k.e("s_lshl_b32 s%d, s%d, 6" % (s_t, s_rb))
    k.e("v_add_u32 v14, s%d, v12" % s_t)
    k.e("v_lshlrev_b32 v14, 10, v14")
    k.e("v_lshl_add_u32 v14, v13, 4, v14")
    for i in range(16):
        k.e("buffer_load_dwordx4 %s, v14, %s, 0 offen offset:%d" % (vr(XR + 4 * i, 4), sr(SX, 4), 64 * i))
    for r in range(16, 24):
        k.e("v_mov_b32 v%d, 0" % r)
    for i in range(16):
        k.e("s_waitcnt vmcnt(%d)" % (15 - i))
        for j in range(4):
            x = XR + 4 * i + j
            f = FR + 8 * i + 2 * j
            k.e("v_lshlrev_b32 %s, 16, %s" % (vr(f), vr(x)))
            k.e("v_and_b32 %s, 0xffff0000, %s" % (vr(f + 1), vr(x)))
        for j in range(4):
            f = FR + 8 * i + 2 * j
            a = 16 + 2 * (j & 3)
            k.e("v_pk_add_f32 %s, %s, %s" % (vr(a, 2), vr(a, 2), vr(f, 2)))
    k.e("v_pk_add_f32 v[16:17], v[16:17], v[18:19]")
    k.e("v_pk_add_f32 v[20:21], v[20:21], v[22:23]")
    k.e("v_pk_add_f32 v[16:17], v[16:17], v[20:21]")
    k.e("v_add_f32 v16, v16, v17")
    k.e("s_nop 1")
    k.e("v_add_f32_dpp v17, v16, v16 quad_perm:[1,0,3,2] row_mask:0xf bank_mask:0xf")
    k.e("s_nop 1")
    k.e("v_add_f32_dpp v16, v17, v17 quad_perm:[2,3,0,1] row_mask:0xf bank_mask:0xf")
    k.e("v_mul_f32 v16, %s, v16" % hx(f32bits(1.0 / D)))
    k.e("v_cvt_pk_bf16_f32 v17, v16, v16")
    k.e("v_and_b32 v18, 0xffff0000, v17")
    k.e("v_mov_b32 v19, v18")
    k.e("v_sub_f32 v24, v16, v18")
    for r in range(16, 18):
        k.e("v_mov_b32 v%d, 0" % r)
    for r in range(20, 24):
        k.e("v_mov_b32 v%d, 0" % r)
    k.e("v_mov_b32 v26, 0")
    k.e("v_mov_b32 v27, 0")
    accs = [16, 20, 22, 26]
    for i in range(64):
        f = FR + 2 * i
        k.e("v_pk_add_f32 %s, %s, v[18:19] neg_lo:[0,1] neg_hi:[0,1]" % (vr(f, 2), vr(f, 2)))
    for i in range(64):
        f = FR + 2 * i
        a = accs[i & 3]
        k.e("v_pk_fma_f32 %s, %s, %s, %s" % (vr(a, 2), vr(f, 2), vr(f, 2), vr(a, 2)))
    k.e("v_pk_add_f32 v[16:17], v[16:17], v[20:21]")
    k.e("v_pk_add_f32 v[22:23], v[22:23], v[26:27]")
    k.e("v_pk_add_f32 v[16:17], v[16:17], v[22:23]")
    k.e("v_add_f32 v16, v16, v17")
    k.e("s_nop 1")
    k.e("v_add_f32_dpp v17, v16, v16 quad_perm:[1,0,3,2] row_mask:0xf bank_mask:0xf")
    k.e("s_nop 1")
    k.e("v_add_f32_dpp v16, v17, v17 quad_perm:[2,3,0,1] row_mask:0xf bank_mask:0xf")
    k.e("v_mul_f32 v16, %s, v16" % hx(f32bits(1.0 / D)))
    k.e("v_fma_f32 v16, -v24, v24, v16")
    k.e("v_max_f32 v16, 0, v16")
    k.e("v_cvt_pk_bf16_f32 v17, v16, v16")
    k.e("v_and_b32 v16, 0xffff0000, v17")
    k.e("v_add_f32 v16, %s, v16" % hx(f32bits(1e-5)))
    k.e("v_cvt_pk_bf16_f32 v17, v16, v16")
    k.e("v_and_b32 v16, 0xffff0000, v17")
    k.e("v_sqrt_f32 v16, v16")
    k.e("s_nop 0")
    k.e("v_cvt_pk_bf16_f32 v17, v16, v16")
    k.e("v_and_b32 v16, 0xffff0000, v17")
    k.e("v_rcp_f32 v16, v16")
    k.e("s_nop 0")
    k.e("v_mov_b32 v17, v16")
    k.e("v_and_b32 v28, 15, v12")
    k.e("v_lshlrev_b32 v29, 10, v12")
    for j in range(4):
        k.e("v_add_u32 v30, %d, v13" % (4 * j))
        k.e("v_xor_b32 v30, v30, v28")
        k.e("v_lshl_add_u32 v%d, v30, 4, v29" % (32 + j))
    for i in range(16):
        for j in range(4):
            f = FR + 8 * i + 2 * j
            k.e("v_pk_mul_f32 %s, %s, v[16:17]" % (vr(f, 2), vr(f, 2)))
        for j in range(4):
            f = FR + 8 * i + 2 * j
            k.e("v_cvt_pk_bf16_f32 %s, %s, %s" % (vr(XR + 4 * i + j), vr(f), vr(f + 1)))
        k.e("ds_write_b128 v%d, %s offset:%d" % (32 + (i & 3), vr(XR + 4 * i, 4), (i >> 2) * 256))
    k.e("v_and_b32 v28, 31, v1")
    k.e("v_lshlrev_b32 v29, 10, v28")
    k.e("v_and_b32 v28, 15, v1")
    for e_ in range(8):
        k.e("v_add_u32 v30, %d, v5" % (2 * e_))
        k.e("v_xor_b32 v30, v30, v28")
        k.e("v_lshl_add_u32 v%d, v30, 4, v29" % (40 + e_))
    k.e("v_lshrrev_b32 v28, 4, v1")
    k.e("v_and_b32 v29, 15, v1")
    k.e("v_lshrrev_b32 v30, 2, v29")
    k.e("v_and_b32 v31, 3, v29")
    k.e("v_lshrrev_b32 v50, 1, v28")
    k.e("v_lshl_add_u32 v50, v50, 3, v30")
    k.e("v_lshlrev_b32 v50, 9, v50")
    k.e("v_and_b32 v51, 1, v28")
    k.e("v_lshlrev_b32 v51, 5, v51")
    k.e("v_lshl_add_u32 v51, v31, 3, v51")
    k.e("v_add3_u32 v50, v50, v51, %d" % 0)
    k.e("v_add_u32 v50, %d, v50" % WBUF)
    for t in range(2):
        k.e("s_lshl_b32 s%d, s%d, 1" % (s_t, s_w))
        k.e("s_add_u32 s%d, s%d, %d" % (s_t, s_t, t))
        k.e("v_xor_b32 v51, s%d, v30" % s_t)
        k.e("v_lshl_add_u32 v%d, v51, 6, v50" % (48 + t))
    ACC = 128
    FRG = 64
    for r in range(64):
        k.e("v_mov_b32 v%d, 0" % (ACC + r))
    k.e("s_waitcnt vmcnt(0) lgkmcnt(0)")
    k.e("s_barrier")

    def reads(kc, kk, st):
        b = FRG + 16 * st
        e_ = (kc & 1) * 4 + kk
        for rt in range(2):
            k.e("ds_read_b128 %s, v%d offset:%d" % (vr(b + 4 * rt, 4), 40 + e_, rt * 32768 + (kc >> 1) * 256))
        for ct in range(2):
            off = (kc & 1) * 32768 + kk * 8192
            k.e("ds_read_b64_tr_b16 %s, v%d offset:%d" % (vr(b + 8 + 4 * ct, 2), 48 + ct, off))
            k.e("ds_read_b64_tr_b16 %s, v%d offset:%d" % (vr(b + 8 + 4 * ct + 2, 2), 48 + ct, off + 2048))

    def mainloop(transposed):
        for kc in range(8):
            if kc < 7:
                wdma(kc + 1)
            reads(kc, 0, 0)
            for kk in range(4):
                if kk < 3:
                    reads(kc, kk + 1, (kk + 1) & 1)
                    k.e("s_waitcnt lgkmcnt(6)")
                else:
                    k.e("s_waitcnt lgkmcnt(0)")
                b = FRG + 16 * (kk & 1)
                for rt in range(2):
                    for ct in range(2):
                        a = ACC + 16 * (2 * rt + ct)
                        xf, wf = vr(b + 4 * rt, 4), vr(b + 8 + 4 * ct, 4)
                        if transposed:
                            k.e("v_mfma_f32_32x32x16_bf16 %s, %s, %s, %s" % (vr(a, 16), wf, xf, vr(a, 16)))
                        else:
                            k.e("v_mfma_f32_32x32x16_bf16 %s, %s, %s, %s" % (vr(a, 16), xf, wf, vr(a, 16)))
            if kc < 7:
                k.e("s_waitcnt vmcnt(0)")
                k.e("s_barrier")
        k.e("s_nop 15")
        k.e("s_nop 3")

    if kind == 'qkv':
        lv = k.newlabel("vpath")
        k.e("s_cmp_ge_u32 s%d, 4" % s_cb)
        k.e("s_cbranch_scc1 %s" % lv)
        mainloop(True)
        k.e("s_cmp_lt_u32 s%d, 2" % s_cb)
        k.e("s_cselect_b32 s%d, %s, 1.0" % (s_scale, hx(f32bits(0.25 * 1.4426950408889634))))
        k.e("s_cselect_b32 s%d, %d, %d" % (s_obase, WS_Q, WS_K))
        k.srd(SO, P_WS, 0, 6 * MB)
        k.e("s_and_b32 s%d, s%d, 1" % (s_t, s_cb))
        k.e("s_lshl_b32 s%d, s%d, 20" % (s_t, s_t))
        k.e("s_add_u32 s%d, s%d, s%d" % (s_obase, s_obase, s_t))
        k.e("s_lshl_b32 s%d, s%d, 18" % (s_t, s_w))
        k.e("s_add_u32 s%d, s%d, s%d" % (s_obase, s_obase, s_t))
        k.e("s_lshl_b32 s%d, s%d, 11" % (s_t, s_rb))
        k.e("s_add_u32 s%d, s%d, s%d" % (s_obase, s_obase, s_t))
        k.e("v_and_b32 v28, 31, v1")
        k.e("v_lshlrev_b32 v28, 4, v28")
        k.e("v_lshl_add_u32 v28, v5, 3, v28")
        for rt in range(2):
            for ct in range(2):
                a = ACC + 16 * (2 * rt + ct)
                for g in range(4):
                    r0 = a + 4 * g
                    for j in range(4):
                        k.e("v_mul_f32 %s, s%d, %s" % (vr(r0 + j), s_scale, vr(r0 + j)))
                    t0 = 32 + 2 * (g & 1)
                    k.e("v_cvt_pk_bf16_f32 v%d, %s, %s" % (t0, vr(r0), vr(r0 + 1)))
                    k.e("v_cvt_pk_bf16_f32 v%d, %s, %s" % (t0 + 1, vr(r0 + 2), vr(r0 + 3)))
                    k.e("s_add_u32 s%d, s%d, %d" % (s_t, s_obase, (ct * 2 + (g >> 1)) * 65536 + rt * 1024 + (g & 1) * 512))
                    k.e("buffer_store_dwordx2 v[%d:%d], v28, %s, s%d offen" % (t0, t0 + 1, sr(SO, 4), s_t))
        k.e("s_endpgm")
        k.label(lv)
        mainloop(False)
        k.srd(SO, P_WS, WS_V, 2 * MB)
        k.e("s_and_b32 s%d, s%d, 1" % (s_t, s_cb))
        k.e("s_lshl_b32 s%d, s%d, 20" % (s_obase, s_t))
        k.e("s_lshl_b32 s%d, s%d, 18" % (s_t, s_w))
        k.e("s_add_u32 s%d, s%d, s%d" % (s_obase, s_obase, s_t))
        k.e("s_lshl_b32 s%d, s%d, 11" % (s_t, s_rb))
        k.e("s_add_u32 s%d, s%d, s%d" % (s_obase, s_obase, s_t))
        k.e("v_bfe_u32 v28, v1, 4, 1")
        k.e("v_lshlrev_b32 v28, 16, v28")
        k.e("v_lshl_add_u32 v28, v5, 8, v28")
        k.e("v_and_b32 v29, 15, v1")
        k.e("v_lshl_add_u32 v28, v29, 4, v28")
        for rt in range(2):
            for ct in range(2):
                a = ACC + 16 * (2 * rt + ct)
                for half in range(2):
                    t0 = 32 + 4 * half
                    for j in range(4):
                        r0 = a + 8 * half + 2 * j
                        k.e("v_cvt_pk_bf16_f32 v%d, %s, %s" % (t0 + j, vr(r0), vr(r0 + 1)))
                    k.e("s_add_u32 s%d, s%d, %d" % (s_t, s_obase, ct * 2 * 65536 + (rt * 2 + half) * 512))
                    k.e("buffer_store_dwordx4 v[%d:%d], v28, %s, s%d offen" % (t0, t0 + 3, sr(SO, 4), s_t))
                    k.e("s_nop 1")
    else:
        mainloop(True)
        k.srd(SB, P_B1, 0, F * 2)
        k.srd(SO, P_WS, WS_H, S * F * 2)
        k.e("s_lshl_b32 s%d, s%d, 8" % (s_t, s_cb))
        k.e("s_lshl_b32 s%d, s%d, 6" % (s_t2, s_w))
        k.e("s_add_u32 s%d, s%d, s%d" % (s_t, s_t, s_t2))
        k.e("s_lshl_b32 s%d, s%d, 1" % (s_obase, s_t))
        k.e("v_lshlrev_b32 v28, 3, v5")
        BI = 64
        for ct in range(2):
            for g in range(4):
                k.e("buffer_load_dwordx2 %s, v28, %s, s%d offen offset:%d" % (vr(BI + 2 * (4 * ct + g), 2), sr(SB, 4), s_obase, (ct * 32 + 8 * g) * 2))
        k.e("v_and_b32 v29, 31, v1")
        k.e("s_lshl_b32 s%d, s%d, 6" % (s_t, s_rb))
        k.e("v_add_u32 v29, s%d, v29" % s_t)
        k.e("s_mov_b32 s%d, %d" % (s_t, F * 2))
        k.e("v_mul_lo_u32 v29, v29, s%d" % s_t)
        k.e("v_add_u32 v29, v29, v28")
        k.e("s_waitcnt vmcnt(0)")
        BF = 96
        for q in range(8):
            for h2 in range(2):
                k.e("v_lshlrev_b32 %s, 16, %s" % (vr(BF + 4 * q + 2 * h2), vr(BI + 2 * q + h2)))
                k.e("v_and_b32 %s, 0xffff0000, %s" % (vr(BF + 4 * q + 2 * h2 + 1), vr(BI + 2 * q + h2)))
        c1 = -2.0 * 0.7978845608028654 * 1.4426950408889634
        k.e("s_mov_b32 s%d, %s" % (s_t2, hx(f32bits(c1 * 0.044715))))
        k.e("v_mov_b32 v31, %s" % hx(f32bits(c1)))
        for rt in range(2):
            for ct in range(2):
                a = ACC + 16 * (2 * rt + ct)
                for g in range(4):
                    r0 = a + 4 * g
                    bq = BF + 4 * (4 * ct + g)
                    for p in range(2):
                        round_bf16_to_f32(k, r0 + 2 * p, r0 + 2 * p + 1, r0 + 2 * p, r0 + 2 * p + 1, 32 + p)
                    for j in range(4):
                        k.e("v_add_f32 %s, %s, %s" % (vr(r0 + j), vr(r0 + j), vr(bq + j)))
                    for p in range(2):
                        round_bf16_to_f32(k, r0 + 2 * p, r0 + 2 * p + 1, r0 + 2 * p, r0 + 2 * p + 1, 32 + p)
                    for j in range(4):
                        k.e("v_mul_f32 v%d, %s, %s" % (36 + j, vr(r0 + j), vr(r0 + j)))
                    for j in range(4):
                        k.e("v_fma_f32 v%d, v%d, s%d, v31" % (36 + j, 36 + j, s_t2))
                    for j in range(4):
                        k.e("v_mul_f32 v%d, v%d, %s" % (36 + j, 36 + j, vr(r0 + j)))
                    for j in range(4):
                        k.e("v_exp_f32 v%d, v%d" % (36 + j, 36 + j))
                    for j in range(4):
                        k.e("v_add_f32 v%d, 1.0, v%d" % (36 + j, 36 + j))
                    for j in range(4):
                        k.e("v_rcp_f32 v%d, v%d" % (36 + j, 36 + j))
                    k.e("s_nop 0")
                    for j in range(4):
                        k.e("v_mul_f32 %s, %s, v%d" % (vr(r0 + j), vr(r0 + j), 36 + j))
                    t0 = 40 + 2 * (g & 1)
                    k.e("v_cvt_pk_bf16_f32 v%d, %s, %s" % (t0, vr(r0), vr(r0 + 1)))
                    k.e("v_cvt_pk_bf16_f32 v%d, %s, %s" % (t0 + 1, vr(r0 + 2), vr(r0 + 3)))
                    k.e("s_add_u32 s%d, s%d, %d" % (s_t, s_obase, rt * 32 * F * 2 + (ct * 32 + 8 * g) * 2))
                    k.e("buffer_store_dwordx2 v[%d:%d], v29, %s, s%d offen" % (t0, t0 + 1, sr(SO, 4), s_t))
    k.end()
    return k, NWG, 256, 131072


def attention(name):
    k = K(name, 128)
    k.prologue(256)
    SQ, SK, SV, SO = 28, 32, 36, 40
    s_h, s_qc, s_w, s_t, s_cnt = 48, 49, 50, 51, 52
    ONES = 131072
    k.e("s_and_b32 s%d, s2, 31" % s_h)
    k.e("s_lshr_b32 s%d, s2, 5" % s_qc)
    k.e("v_lshrrev_b32 v2, 6, v0")
    k.e("v_and_b32 v1, 63, v0")
    k.e("s_nop 0")
    k.e("v_readfirstlane_b32 s%d, v2" % s_w)
    k.e("s_waitcnt lgkmcnt(0)")
    k.srd(SQ, P_WS, WS_Q, 2 * MB)
    k.srd(SK, P_WS, WS_K, 2 * MB)
    k.srd(SV, P_WS, WS_V, 2 * MB)
    k.srd(SO, P_WS, WS_O, 2 * MB)
    k.e("v_lshlrev_b32 v3, 4, v1")
    k.e("s_lshl_b32 s%d, s%d, 16" % (s_t, s_h))
    k.e("s_lshl_b32 s%d, s%d, 13" % (s_cnt, s_qc))
    k.e("s_add_u32 s%d, s%d, s%d" % (s_t, s_t, s_cnt))
    k.e("s_lshl_b32 s%d, s%d, 10" % (s_cnt, s_w))
    k.e("s_add_u32 s%d, s%d, s%d" % (s_t, s_t, s_cnt))
    QF = 28
    k.e("buffer_load_dwordx4 %s, v3, %s, s%d offen" % (vr(QF, 4), sr(SQ, 4), s_t))
    k.e("s_lshl_b32 s%d, s%d, 16" % (s_t, s_h))
    k.e("s_lshl_b32 s%d, s%d, 13" % (s_cnt, s_w))
    k.e("s_add_u32 s%d, s%d, s%d" % (s_t, s_t, s_cnt))
    for which, srd_, base in ((0, SK, 0), (1, SV, 65536)):
        for i in range(8):
            k.e("s_add_u32 m0, s%d, %d" % (s_cnt, base + i * 1024))
            k.e("s_add_u32 s%d, s%d, %d" % (s_cnt + 1, s_t, i * 1024))
            k.e("buffer_load_dwordx4 v3, %s, s%d offen lds" % (sr(srd_, 4), s_cnt + 1))
    k.e("v_mov_b32 v8, 0x3f803f80")
    k.e("v_mov_b32 v9, 0x3f803f80")
    k.e("v_mov_b32 v10, 0x3f803f80")
    k.e("v_mov_b32 v11, 0x3f803f80")
    k.e("v_mov_b32 v12, %d" % ONES)
    k.e("ds_write_b128 v12, v[8:11]")
    k.e("v_lshrrev_b32 v5, 5, v1")
    k.e("v_and_b32 v13, 15, v1")
    k.e("v_lshlrev_b32 v13, 4, v13")
    k.e("v_lshl_add_u32 v13, v5, 8, v13")
    k.e("v_add_u32 v13, 65536, v13")
    k.e("v_and_b32 v14, 16, v1")
    k.e("v_cmp_eq_u32 vcc, 0, v14")
    k.e("v_mov_b32 v15, 0")
    k.e("v_mov_b32 v16, 2048")
    k.e("s_nop 1")
    k.e("v_cndmask_b32 v17, v15, v16, vcc")
    for j in range(4):
        k.e("v_add_u32 v14, %d, v13" % (j * 512))
        k.e("v_cndmask_b32 v%d, v12, v14, vcc" % (18 + j))
    k.e("v_mov_b32 v22, v3")

    NEG = 32
    SA, SB_ = 48, 64
    OA = 80
    PK = 96
    KF0, KF1 = 104, 108
    VF = 112
    MX = 24

    k.e("s_waitcnt vmcnt(8) lgkmcnt(0)")
    k.e("s_barrier")
    for j in range(4):
        k.e("v_mov_b32 v%d, 0xff800000" % (MX + j))
    k.e("ds_read_b128 %s, v22" % vr(KF0, 4))
    k.e("ds_read_b128 %s, v22 offset:1024" % vr(KF1, 4))
    k.e("s_mov_b32 s%d, 0" % s_cnt)
    l1 = k.newlabel("p1")
    k.label(l1)
    k.e("s_waitcnt lgkmcnt(0)")
    k.e("v_mfma_f32_32x32x16_bf16 %s, %s, %s, 0" % (vr(SA, 16), vr(KF0, 4), vr(QF, 4)))
    k.e("v_mfma_f32_32x32x16_bf16 %s, %s, %s, 0" % (vr(SB_, 16), vr(KF1, 4), vr(QF, 4)))
    k.e("v_add_u32 v22, 2048, v22")
    k.e("s_add_u32 s%d, s%d, 1" % (s_cnt, s_cnt))
    k.e("ds_read_b128 %s, v22" % vr(KF0, 4))
    k.e("ds_read_b128 %s, v22 offset:1024" % vr(KF1, 4))
    k.e("s_cmp_lt_u32 s%d, 32" % s_cnt)
    k.e("s_nop 7")
    for j in range(8):
        k.e("v_max3_f32 v%d, v%d, %s, %s" % (MX + (j & 3), MX + (j & 3), vr(SA + 2 * j), vr(SA + 2 * j + 1)))
    for j in range(8):
        k.e("v_max3_f32 v%d, v%d, %s, %s" % (MX + (j & 3), MX + (j & 3), vr(SB_ + 2 * j), vr(SB_ + 2 * j + 1)))
    k.e("s_cbranch_scc1 %s" % l1)
    k.e("v_max3_f32 v24, v24, v25, v26")
    k.e("v_max_f32 v24, v24, v27")
    k.e("v_mov_b32 v25, v24")
    k.e("s_nop 1")
    k.e("v_permlane32_swap_b32 v24, v25")
    k.e("s_nop 1")
    k.e("v_max_f32 v24, v24, v25")
    k.e("v_sub_f32 v24, 0, v24")
    for j in range(16):
        k.e("v_mov_b32 v%d, v24" % (NEG + j))
    for j in range(16):
        k.e("v_mov_b32 v%d, 0" % (OA + j))
    k.e("s_waitcnt vmcnt(0) lgkmcnt(0)")
    k.e("s_barrier")
    k.e("v_mov_b32 v22, v3")
    k.e("ds_read_b128 %s, v22" % vr(KF0, 4))
    k.e("ds_read_b128 %s, v22 offset:1024" % vr(KF1, 4))
    for j in range(4):
        k.e("ds_read_b128 %s, v%d" % (vr(VF + 4 * j, 4), 18 + j))
    k.e("s_waitcnt lgkmcnt(5)")
    k.e("v_mfma_f32_32x32x16_bf16 %s, %s, %s, %s" % (vr(SA, 16), vr(KF0, 4), vr(QF, 4), vr(NEG, 16)))
    k.e("v_add_u32 v22, 2048, v22")
    k.e("s_mov_b32 s%d, 0" % s_cnt)
    k.e("s_nop 7")
    k.e("s_nop 3")

    def softmax_pv(Sx, vf0, vf1):
        for j in range(16):
            k.e("v_exp_f32 %s, %s" % (vr(Sx + j), vr(Sx + j)))
            if j % 2 == 1 and j >= 3:
                k.e("v_cvt_pk_bf16_f32 %s, %s, %s" % (vr(PK + (j - 3) // 2), vr(Sx + j - 3), vr(Sx + j - 2)))
        k.e("v_cvt_pk_bf16_f32 %s, %s, %s" % (vr(PK + 7), vr(Sx + 14), vr(Sx + 15)))
        k.e("s_nop 1")
        k.e("v_mfma_f32_32x32x16_bf16 %s, %s, %s, %s" % (vr(OA, 16), vr(vf0, 4), vr(PK, 4), vr(OA, 16)))
        k.e("v_mfma_f32_32x32x16_bf16 %s, %s, %s, %s" % (vr(OA, 16), vr(vf1, 4), vr(PK + 4, 4), vr(OA, 16)))

    l2 = k.newlabel("p2")
    k.label(l2)
    k.e("s_waitcnt lgkmcnt(0)")
    k.e("v_mfma_f32_32x32x16_bf16 %s, %s, %s, %s" % (vr(SB_, 16), vr(KF1, 4), vr(QF, 4), vr(NEG, 16)))
    k.e("ds_read_b128 %s, v22" % vr(KF0, 4))
    k.e("ds_read_b128 %s, v22 offset:1024" % vr(KF1, 4))
    softmax_pv(SA, VF, VF + 4)
    for j in range(4):
        k.e("v_add_u32 v%d, v%d, v17" % (18 + j, 18 + j))
    k.e("ds_read_b128 %s, v18" % vr(VF, 4))
    k.e("ds_read_b128 %s, v19" % vr(VF + 4, 4))
    k.e("s_waitcnt lgkmcnt(2)")
    k.e("v_mfma_f32_32x32x16_bf16 %s, %s, %s, %s" % (vr(SA, 16), vr(KF0, 4), vr(QF, 4), vr(NEG, 16)))
    k.e("v_add_u32 v22, 2048, v22")
    k.e("s_add_u32 s%d, s%d, 1" % (s_cnt, s_cnt))
    k.e("s_cmp_lt_u32 s%d, 32" % s_cnt)
    softmax_pv(SB_, VF + 8, VF + 12)
    k.e("ds_read_b128 %s, v20" % vr(VF + 8, 4))
    k.e("ds_read_b128 %s, v21" % vr(VF + 12, 4))
    k.e("s_cbranch_scc1 %s" % l2)
    k.e("s_nop 15")
    k.e("s_nop 3")
    k.e("v_rcp_f32 v24, %s" % vr(OA + 8))
    k.e("s_nop 0")
    for j in range(8):
        k.e("v_mul_f32 %s, %s, v24" % (vr(OA + j), vr(OA + j)))
    for j in range(4):
        k.e("v_cvt_pk_bf16_f32 %s, %s, %s" % (vr(PK + j), vr(OA + 2 * j), vr(OA + 2 * j + 1)))
    k.e("v_and_b32 v24, 31, v1")
    k.e("v_lshlrev_b32 v24, 10, v24")
    k.e("v_lshl_add_u32 v24, v5, 3, v24")
    k.e("s_lshl_b32 s%d, s%d, 18" % (s_t, s_qc))
    k.e("s_lshl_b32 s%d, s%d, 15" % (s_cnt, s_w))
    k.e("s_add_u32 s%d, s%d, s%d" % (s_t, s_t, s_cnt))
    k.e("s_lshl_b32 s%d, s%d, 5" % (s_cnt, s_h))
    k.e("s_add_u32 s%d, s%d, s%d" % (s_t, s_t, s_cnt))
    k.e("buffer_store_dwordx2 %s, v24, %s, s%d offen" % (vr(PK, 2), sr(SO, 4), s_t))
    k.e("buffer_store_dwordx2 %s, v24, %s, s%d offen offset:16" % (vr(PK + 2, 2), sr(SO, 4), s_t))
    k.e("s_waitcnt lgkmcnt(0)")
    k.end()
    return k, 256, 512, 131072 + 4096


def gemm64(name, asrc, Kdim, wptr, bias, rsrc, dst):
    NCH = Kdim // 128
    AST = Kdim * 2
    k = K(name, 128)
    k.prologue(256)
    SA_, SW, SR, SO, SB = 28, 32, 36, 40, 44
    s_rb, s_cb, s_w, s_t, s_t2, s_abase, s_wbase, s_m0, s_kc, s_cnt = 48, 49, 50, 51, 52, 53, 54, 55, 56, 57
    k.e("s_lshr_b32 s%d, s2, 3" % s_rb)
    k.e("s_and_b32 s%d, s2, 7" % s_cb)
    k.e("v_lshrrev_b32 v2, 6, v0")
    k.e("v_and_b32 v1, 63, v0")
    k.e("s_nop 0")
    k.e("v_readfirstlane_b32 s%d, v2" % s_w)
    k.e("s_waitcnt lgkmcnt(0)")
    k.srd(SA_, P_WS, asrc, S * Kdim * 2)
    k.srd(SW, wptr, 0, Kdim * D * 2)
    src_srd(k, SR, rsrc, S * D * 2)
    src_srd(k, SO, dst, S * D * 2)
    if bias is not None:
        k.srd(SB, bias, 0, D * 2)
    k.e("v_lshrrev_b32 v7, 4, v1")
    k.e("v_and_b32 v8, 15, v1")
    k.e("s_mov_b32 s%d, %d" % (s_t, AST))
    for i in range(4):
        k.e("v_add_u32 v9, %d, v7" % (4 * i))
        k.e("v_xor_b32 v10, v8, v9")
        k.e("v_mul_lo_u32 v9, v9, s%d" % s_t)
        k.e("v_lshl_add_u32 v%d, v10, 4, v9" % (3 + i))
    k.e("s_lshl_b32 s%d, s%d, 6" % (s_t, s_rb))
    k.e("s_lshl_b32 s%d, s%d, 4" % (s_t2, s_w))
    k.e("s_add_u32 s%d, s%d, s%d" % (s_t, s_t, s_t2))
    k.e("s_mul_i32 s%d, s%d, %d" % (s_abase, s_t, AST))
    k.e("v_lshrrev_b32 v9, 3, v1")
    k.e("v_and_b32 v10, 7, v1")
    k.e("v_lshrrev_b32 v12, 2, v10")
    k.e("v_and_b32 v13, 3, v10")
    k.e("v_and_b32 v14, 1, v7")
    k.e("v_xor_b32 v12, v12, v14")
    k.e("v_lshlrev_b32 v9, 10, v9")
    k.e("v_lshl_add_u32 v9, v12, 6, v9")
    k.e("v_lshl_add_u32 v11, v13, 4, v9")
    k.e("s_lshl_b32 s%d, s%d, 15" % (s_wbase, s_w))
    k.e("s_lshl_b32 s%d, s%d, 7" % (s_t, s_cb))
    k.e("s_add_u32 s%d, s%d, s%d" % (s_wbase, s_wbase, s_t))
    k.e("s_lshl_b32 s%d, s%d, 12" % (s_m0, s_w))

    def dma(kc_const=None, stage_sgpr=None):
        st = (kc_const & 3) * 32768
        for i in range(4):
            k.e("s_add_u32 m0, s%d, %d" % (s_m0, st + i * 1024))
            k.e("s_add_u32 s%d, s%d, %d" % (s_t, s_abase, kc_const * 256))
            k.e("buffer_load_dwordx4 v%d, %s, s%d offen lds" % (3 + i, sr(SA_, 4), s_t))
        for i in range(4):
            k.e("s_add_u32 m0, s%d, %d" % (s_m0, st + 16384 + i * 1024))
            k.e("s_add_u32 s%d, s%d, %d" % (s_t, s_wbase, (kc_const * 128 + i * 8) * 1024))
            k.e("buffer_load_dwordx4 v11, %s, s%d offen lds" % (sr(SW, 4), s_t))

    for kc in range(min(3, NCH)):
        dma(kc)
    k.e("v_lshrrev_b32 v15, 5, v1")
    k.e("v_and_b32 v16, 31, v1")
    k.e("s_lshr_b32 s%d, s%d, 1" % (s_t, s_w))
    k.e("s_lshl_b32 s%d, s%d, 5" % (s_t, s_t))
    k.e("v_add_u32 v16, s%d, v16" % s_t)
    k.e("v_lshlrev_b32 v17, 8, v16")
    k.e("v_and_b32 v18, 15, v1")
    for e_ in range(8):
        k.e("v_add_u32 v19, %d, v15" % (2 * e_))
        k.e("v_xor_b32 v19, v19, v18")
        k.e("v_lshl_add_u32 v%d, v19, 4, v17" % (24 + e_))
    k.e("v_lshrrev_b32 v19, 2, v18")
    k.e("v_and_b32 v20, 3, v18")
    k.e("v_lshrrev_b32 v21, 1, v7")
    k.e("v_lshl_add_u32 v21, v21, 3, v19")
    k.e("v_lshlrev_b32 v21, 7, v21")
    k.e("v_and_b32 v22, 1, v7")
    k.e("v_lshlrev_b32 v22, 5, v22")
    k.e("v_lshl_add_u32 v22, v20, 3, v22")
    k.e("v_add_u32 v21, v21, v22")
    k.e("v_lshrrev_b32 v19, 1, v19")
    k.e("s_and_b32 s%d, s%d, 1" % (s_t, s_w))
    k.e("v_xor_b32 v19, s%d, v19" % s_t)
    k.e("v_lshl_add_u32 v32, v19, 6, v21")
    k.e("v_add_u32 v32, 16384, v32")
    k.e("v_add_u32 v33, 65536, v32")
    for e_ in range(8):
        k.e("v_add_u32 v%d, 65536, v%d" % (112 + e_, 24 + e_))
    ACC = 64
    FRG = 96
    for r in range(16):
        k.e("v_mov_b32 v%d, 0" % (ACC + r))

    def reads(st_off, kk, s_):
        b = FRG + 8 * s_
        hi = st_off >= 65536
        so = st_off - 65536 * hi
        k.e("ds_read_b128 %s, v%d offset:%d" % (vr(b, 4), (112 if hi else 24) + kk, so))
        k.e("ds_read_b64_tr_b16 %s, v%d offset:%d" % (vr(b + 4, 2), 32 + hi, so + kk * 2048))
        k.e("ds_read_b64_tr_b16 %s, v%d offset:%d" % (vr(b + 6, 2), 32 + hi, so + kk * 2048 + 512))

    for kc in range(NCH):
        inflight = min(NCH - 1 - kc, 2)
        k.e("s_waitcnt vmcnt(%d)" % (8 * inflight))
        k.e("s_barrier")
        if kc + 3 < NCH:
            dma(kc + 3)
        st_off = (kc & 3) * 32768
        reads(st_off, 0, 0)
        for kk in range(8):
            if kk < 7:
                reads(st_off, kk + 1, (kk + 1) & 1)
                k.e("s_waitcnt lgkmcnt(3)")
            else:
                k.e("s_waitcnt lgkmcnt(0)")
            b = FRG + 8 * (kk & 1)
            k.e("v_mfma_f32_32x32x16_bf16 %s, %s, %s, %s" % (vr(ACC, 16), vr(b + 4, 4), vr(b, 4), vr(ACC, 16)))
    k.e("s_lshl_b32 s%d, s%d, 6" % (s_t, s_rb))
    k.e("v_add_u32 v16, s%d, v16" % s_t)
    k.e("v_lshlrev_b32 v16, 10, v16")
    k.e("v_lshl_add_u32 v16, v15, 3, v16")
    k.e("s_lshl_b32 s%d, s%d, 7" % (s_t, s_cb))
    k.e("s_and_b32 s%d, s%d, 1" % (s_t2, s_w))
    k.e("s_lshl_b32 s%d, s%d, 6" % (s_t2, s_t2))
    k.e("s_add_u32 s%d, s%d, s%d" % (s_t, s_t, s_t2))
    RX = 40
    for g in range(4):
        k.e("buffer_load_dwordx2 %s, v16, %s, s%d offen offset:%d" % (vr(RX + 2 * g, 2), sr(SR, 4), s_t, 16 * g))
    if bias is not None:
        k.e("v_lshlrev_b32 v17, 3, v15")
        for g in range(4):
            k.e("buffer_load_dwordx2 %s, v17, %s, s%d offen offset:%d" % (vr(48 + 2 * g, 2), sr(SB, 4), s_t, 16 * g))
    k.e("s_nop 15")
    k.e("s_waitcnt vmcnt(0)")
    for g in range(4):
        r0 = ACC + 4 * g
        for p in range(2):
            round_bf16_to_f32(k, r0 + 2 * p, r0 + 2 * p + 1, r0 + 2 * p, r0 + 2 * p + 1, 56 + p)
        if bias is not None:
            for p in range(2):
                k.e("v_lshlrev_b32 v58, 16, %s" % vr(48 + 2 * g + p))
                k.e("v_and_b32 v59, 0xffff0000, %s" % vr(48 + 2 * g + p))
                k.e("v_add_f32 %s, %s, v58" % (vr(r0 + 2 * p), vr(r0 + 2 * p)))
                k.e("v_add_f32 %s, %s, v59" % (vr(r0 + 2 * p + 1), vr(r0 + 2 * p + 1)))
            for p in range(2):
                round_bf16_to_f32(k, r0 + 2 * p, r0 + 2 * p + 1, r0 + 2 * p, r0 + 2 * p + 1, 56 + p)
        for p in range(2):
            k.e("v_lshlrev_b32 v58, 16, %s" % vr(RX + 2 * g + p))
            k.e("v_and_b32 v59, 0xffff0000, %s" % vr(RX + 2 * g + p))
            k.e("v_add_f32 %s, %s, v58" % (vr(r0 + 2 * p), vr(r0 + 2 * p)))
            k.e("v_add_f32 %s, %s, v59" % (vr(r0 + 2 * p + 1), vr(r0 + 2 * p + 1)))
        k.e("v_cvt_pk_bf16_f32 v%d, %s, %s" % (60, vr(r0), vr(r0 + 1)))
        k.e("v_cvt_pk_bf16_f32 v%d, %s, %s" % (61, vr(r0 + 2), vr(r0 + 3)))
        k.e("buffer_store_dwordx2 v[60:61], v16, %s, s%d offen offset:%d" % (sr(SO, 4), s_t, 16 * g))
        k.e("s_nop 1")
    k.end()
    return k, 256, 256, 131072


def build():
    ks = []
    ks.append(lngemm("qkv1_kernel", ('arg', P_AX), P_WQKV, 3 * D, 'qkv'))
    ks.append(attention("attn_kernel"))
    ks.append(gemm64("wo1_kernel", WS_O, D, P_WO, None, ('arg', P_AX), ('ws', WS_X1)))
    ks.append(lngemm("ffn1a_kernel", ('ws', WS_X1), P_W1, F, 'ffn1'))
    ks.append(gemm64("ffn2a_kernel", WS_H, F, P_W2, P_B2, ('ws', WS_X1), ('ws', WS_X2)))
    ks.append(lngemm("qkv2_kernel", ('ws', WS_X2), P_WQKV, 3 * D, 'qkv'))
    ks.append(gemm64("wo2_kernel", WS_O, D, P_WO, None, ('ws', WS_X2), ('ws', WS_X3)))
    ks.append(lngemm("ffn1b_kernel", ('ws', WS_X3), P_W1, F, 'ffn1'))
    ks.append(gemm64("ffn2b_kernel", WS_H, F, P_W2, P_B2, ('ws', WS_X3), ('arg', P_OUT)))
    byname = {k.name: (k, nwg, blk, lds) for k, nwg, blk, lds in ks}
    order = ["qkv1_kernel", "attn_kernel", "wo1_kernel", "ffn1a_kernel", "ffn2a_kernel",
             "qkv2_kernel", "attn_kernel", "wo2_kernel", "ffn1b_kernel", "ffn2b_kernel"]
    out = []
    for n in order:
        k, nwg, blk, lds = byname[n]
        out.append("; @launch kernel=%s grid=(%d,1,1) block=(%d,1,1) lds=%d" % (n, nwg, blk, lds))
    out.append('.amdgcn_target "amdgcn-amd-amdhsa--gfx950"')
    out.append(".text")
    for k, _, _, _ in ks:
        out += k.lines
    out.append('.section .rodata,"a"')
    for k, _, _, _ in ks:
        out.append(".p2align 6")
        out.append(k.desc())
    return "\n".join(out) + "\n"


if __name__ == "__main__":
    path = sys.argv[1] if len(sys.argv) > 1 else "cdna_kernels/%s.s" % NAME
    open(path, "w").write(build())
    print("wrote", path)
```

```python
import struct, sys, os, json

NAME = "interleave_layers__softmax_full_mha__dense_activation_gelu__prompt"
S, D, H, DH, F = 2048, 512, 32, 16, 1792
EXP = json.loads(os.environ.get("EXP", "{}"))

MB = 1 << 20
WS_Q, WS_K, WS_V, WS_O, WS_X1, WS_H, WS_X2, WS_X3 = 0, 2 * MB, 4 * MB, 6 * MB, 8 * MB, 10 * MB, 18 * MB, 20 * MB
WS_WQ, WS_WO, WS_W1, WS_W2 = 22 * MB, 24 * MB, 25 * MB, 27 * MB
WS_X0 = 30 * MB
WS_ST0, WS_ST1, WS_ST2, WS_ST3 = 32 * MB, 33 * MB, 34 * MB, 35 * MB
WS_CSQ, WS_CS1 = 36 * MB, 36 * MB + 65536

P_AX, P_WQKV, P_WO, P_BX, P_W1, P_B1, P_W2, P_B2, P_OUT, P_DBG, P_WS = 4, 6, 8, 10, 12, 14, 16, 18, 20, 22, 24
QSCALE = 0.25 * 1.4426950408889634


def f32bits(x):
    return struct.unpack("<I", struct.pack("<f", x))[0]


def hx(x):
    return "0x%08x" % (x & 0xFFFFFFFF)


class K:
    def __init__(self, name, nvgpr, nagpr=0, nsgpr=96):
        self.name = name
        self.lines = []
        self.nvgpr = nvgpr
        self.nagpr = nagpr
        self.nsgpr = nsgpr
        self.lab = 0
        self.vm = []

    def e(self, s):
        self.lines.append("    " + s)

    def label(self, l):
        self.lines.append(l + ":")

    def newlabel(self, stem):
        self.lab += 1
        return "L_%s_%s_%d" % (self.name, stem, self.lab)

    def vmem(self, text, tag=None):
        self.e(text)
        self.vm.append(tag)

    def vwait(self, tag, extra=""):
        idx = max(i for i, t in enumerate(self.vm) if t == tag)
        n = len(self.vm) - 1 - idx
        self.e("s_waitcnt vmcnt(%d)%s" % (min(n, 63), extra))

    def prologue(self, nwg):
        self.lines.append(".globl %s" % self.name)
        self.lines.append(".p2align 8")
        self.lines.append(".type %s,@function" % self.name)
        self.lines.append("%s:" % self.name)
        self.e("s_cmp_ge_u32 s2, %d" % nwg)
        self.e("s_cbranch_scc1 L_%s_end" % self.name)
        self.e("s_load_dwordx16 s[4:19], s[0:1], 0")
        self.e("s_load_dwordx4 s[20:23], s[0:1], 64")
        self.e("s_load_dwordx2 s[24:25], s[0:1], 80")

    def srd(self, dst, ptr, off, size):
        if off:
            self.e("s_add_u32 s%d, s%d, %s" % (dst, ptr, hx(off)))
            self.e("s_addc_u32 s%d, s%d, 0" % (dst + 1, ptr + 1))
            self.e("s_and_b32 s%d, s%d, 0xffff" % (dst + 1, dst + 1))
        else:
            self.e("s_mov_b32 s%d, s%d" % (dst, ptr))
            self.e("s_and_b32 s%d, s%d, 0xffff" % (dst + 1, ptr + 1))
        self.e("s_mov_b32 s%d, %s" % (dst + 2, hx(size)))
        self.e("s_mov_b32 s%d, 0x00020000" % (dst + 3))

    def end(self):
        self.label("L_%s_end" % self.name)
        self.e("s_endpgm")

    def desc(self):
        acc = (self.nvgpr + 3) // 4 * 4
        nfv = acc + self.nagpr if self.nagpr else self.nvgpr
        return "\n".join([
            ".amdhsa_kernel %s" % self.name,
            "  .amdhsa_next_free_vgpr %d" % nfv,
            "  .amdhsa_next_free_sgpr %d" % self.nsgpr,
            "  .amdhsa_accum_offset %d" % acc,
            "  .amdhsa_group_segment_fixed_size 0",
            "  .amdhsa_kernarg_size 88",
            "  .amdhsa_user_sgpr_count 2",
            "  .amdhsa_user_sgpr_kernarg_segment_ptr 1",
            "  .amdhsa_system_sgpr_workgroup_id_x 1",
            ".end_amdhsa_kernel",
        ])


def vr(a, n=1):
    return "v%d" % a if n == 1 else "v[%d:%d]" % (a, a + n - 1)


def ar(a, n=1):
    return "a%d" % a if n == 1 else "a[%d:%d]" % (a, a + n - 1)


def sr(a, n=1):
    return "s%d" % a if n == 1 else "s[%d:%d]" % (a, a + n - 1)


def src_srd(k, dst, src, size):
    if src[0] == 'arg':
        k.srd(dst, src[1], 0, size)
    else:
        k.srd(dst, P_WS, src[1], size)


def round_pair(out, lo, hi, tmp):
    out.append("v_cvt_pk_bf16_f32 %s, %s, %s" % (vr(tmp), vr(lo), vr(hi)))
    out.append("v_lshlrev_b32 %s, 16, %s" % (vr(lo), vr(tmp)))
    out.append("v_and_b32 %s, 0xffff0000, %s" % (vr(hi), vr(tmp)))


def prep(name):
    k = K(name, 128)
    segs = [(P_WQKV, D, 3 * D, WS_WQ, 1, 8, WS_CSQ), (P_W1, D, F, WS_W1, 1, 8, WS_CS1),
            (P_WO, D, D, WS_WO, 1, 8, None), (P_W2, F, D, WS_W2, 4, 7, None)]
    nwgs = [(n // 64) * ch for _, kd, n, _, ch, _, _ in segs]
    NX = 128
    NWG = sum(nwgs) + NX
    k.prologue(NWG)
    SW, SO, SS = 28, 32, 36
    s_loc, s_st, s_w, s_t, s_nt, s_ks, s_t2, s_ch, s_lb = 48, 49, 52, 53, 54, 55, 56, 57, 58
    k.e("v_lshrrev_b32 v2, 6, v0")
    k.e("v_and_b32 v1, 63, v0")
    k.e("s_nop 0")
    k.e("v_readfirstlane_b32 s%d, v2" % s_w)
    k.e("s_waitcnt lgkmcnt(0)")
    lx = k.newlabel("xpart")
    k.e("s_cmp_lt_u32 s2, %d" % NX)
    k.e("s_cbranch_scc1 %s" % lx)
    base = NX
    for idx, (ptr, kd, n, wsoff, ch, kpw, cs) in enumerate(segs):
        lnext = k.newlabel("seg")
        if idx < len(segs) - 1:
            k.e("s_cmp_ge_u32 s2, %d" % (base + nwgs[idx]))
            k.e("s_cbranch_scc1 %s" % lnext)
        KSN = kd // 16
        st = n * 2
        k.e("s_sub_u32 s%d, s2, %d" % (s_loc, base))
        k.srd(SW, ptr, 0, kd * n * 2)
        k.srd(SO, P_WS, wsoff, kd * n * 2)
        if ch == 1:
            k.e("s_mov_b32 s%d, s%d" % (s_nt, s_loc))
            k.e("s_mul_i32 s%d, s%d, %d" % (s_ks, s_w, kpw))
        else:
            k.e("s_lshr_b32 s%d, s%d, 2" % (s_nt, s_loc))
            k.e("s_and_b32 s%d, s%d, 3" % (s_ch, s_loc))
            k.e("s_lshl_b32 s%d, s%d, 2" % (s_ch, s_ch))
            k.e("s_add_u32 s%d, s%d, s%d" % (s_ch, s_ch, s_w))
            k.e("s_mul_i32 s%d, s%d, %d" % (s_ks, s_ch, kpw))
        k.e("v_lshrrev_b32 v3, 3, v1")
        k.e("v_mul_u32_u24 v3, %d, v3" % st)
        k.e("v_and_b32 v4, 7, v1")
        k.e("v_lshl_add_u32 v3, v4, 4, v3")
        k.e("s_mul_i32 s%d, s%d, %d" % (s_t2, s_ks, 16 * st))
        k.e("s_lshl_b32 s%d, s%d, 7" % (s_t, s_nt))
        k.e("s_add_u32 s%d, s%d, s%d" % (s_t2, s_t2, s_t))
        k.e("s_lshl_b32 s%d, s%d, 14" % (s_lb, s_w))
        for i in range(2 * kpw):
            k.e("s_add_u32 m0, s%d, %d" % (s_lb, i * 1024))
            k.e("s_nop 0")
            k.e("buffer_load_dwordx4 v3, %s, s%d offen lds" % (sr(SW, 4), s_t2))
            k.e("s_add_u32 s%d, s%d, %d" % (s_t2, s_t2, 8 * st))
        k.e("v_lshrrev_b32 v6, 4, v1")
        k.e("v_and_b32 v7, 15, v1")
        k.e("v_lshrrev_b32 v8, 2, v7")
        k.e("v_and_b32 v9, 3, v7")
        k.e("v_lshrrev_b32 v10, 1, v6")
        k.e("v_lshl_add_u32 v10, v10, 3, v8")
        k.e("v_lshlrev_b32 v10, 7, v10")
        k.e("v_and_b32 v11, 1, v6")
        k.e("v_lshlrev_b32 v11, 5, v11")
        k.e("v_lshl_add_u32 v11, v9, 3, v11")
        k.e("v_add3_u32 v10, v10, v11, s%d" % s_lb)
        k.e("v_lshlrev_b32 v5, 4, v1")
        k.e("s_mul_i32 s%d, s%d, %d" % (s_t, s_nt, 2 * KSN))
        k.e("s_add_u32 s%d, s%d, s%d" % (s_t, s_t, s_ks))
        k.e("s_lshl_b32 s%d, s%d, 10" % (s_t, s_t))
        k.e("v_mov_b32 v12, 0")
        k.e("v_mov_b32 v13, 0")
        k.e("v_mov_b32 v14, 0x3f803f80")
        nst = 0
        for i in range(kpw):
            k.e("s_waitcnt vmcnt(%d)" % (2 * (kpw - 1 - i) + nst))
            for t in range(2):
                d = 16 + 8 * (i & 1) + 4 * t
                k.e("ds_read_b64_tr_b16 %s, v10 offset:%d" % (vr(d, 2), i * 2048 + t * 64))
                k.e("ds_read_b64_tr_b16 %s, v10 offset:%d" % (vr(d + 2, 2), i * 2048 + t * 64 + 512))
            k.e("s_waitcnt lgkmcnt(0)")
            for t in range(2):
                d = 16 + 8 * (i & 1) + 4 * t
                k.e("s_add_u32 s%d, s%d, %d" % (s_t2, s_t, (t * KSN + i) * 1024))
                k.e("buffer_store_dwordx4 %s, v5, %s, s%d offen" % (vr(d, 4), sr(SO, 4), s_t2))
                nst += 1
                if cs is not None:
                    for j in range(4):
                        k.e("v_dot2_f32_bf16 v%d, v%d, v14, v%d" % (12 + t, d + j, 12 + t))
        if cs is not None:
            k.e("s_nop 3")
            k.e("v_mov_b32 v32, v12")
            k.e("v_mov_b32 v33, v13")
            k.e("s_nop 1")
            k.e("v_permlane32_swap_b32 v12, v32")
            k.e("v_permlane32_swap_b32 v13, v33")
            k.e("s_nop 1")
            k.e("v_add_f32 v12, v12, v32")
            k.e("v_add_f32 v13, v13, v33")
            k.e("v_cmp_gt_u32 vcc, 32, v1")
            k.e("s_nop 1")
            k.e("v_cndmask_b32 v12, v13, v12, vcc")
            k.e("v_lshlrev_b32 v7, 2, v1")
            k.e("s_lshl_b32 s%d, s%d, 8" % (s_t, s_w))
            k.e("v_add_u32 v8, s%d, v7" % s_t)
            k.e("v_add_u32 v8, 65536, v8")
            k.e("ds_write_b32 v8, v12")
            k.e("s_waitcnt lgkmcnt(0)")
            k.e("s_barrier")
            k.e("v_add_u32 v8, 65536, v7")
            for w2 in range(4):
                k.e("ds_read_b32 v%d, v8 offset:%d" % (16 + w2, 256 * w2))
            k.e("s_waitcnt lgkmcnt(0)")
            k.e("v_add_f32 v16, v16, v17")
            k.e("v_add_f32 v18, v18, v19")
            k.e("v_add_f32 v16, v16, v18")
            k.srd(SS, P_WS, cs, n * 4)
            k.e("s_lshl_b32 s%d, s%d, 8" % (s_t, s_nt))
            k.e("buffer_store_dword v16, v7, %s, s%d offen" % (sr(SS, 4), s_t))
        k.e("s_endpgm")
        k.label(lnext)
        base += nwgs[idx]
    k.label(lx)
    k.srd(SW, P_AX, 0, S * D * 2)
    k.srd(SO, P_WS, WS_X0, S * D * 2)
    k.srd(SS, P_WS, WS_ST0, S * 256)
    k.e("s_lshl_b32 s%d, s2, 2" % s_t)
    k.e("s_add_u32 s%d, s%d, s%d" % (s_t, s_t, s_w))
    k.e("s_lshr_b32 s%d, s%d, 3" % (s_nt, s_t))
    k.e("s_and_b32 s%d, s%d, 7" % (s_ks, s_t))
    k.e("v_lshrrev_b32 v5, 5, v1")
    k.e("v_and_b32 v4, 31, v1")
    k.e("v_lshlrev_b32 v3, 10, v4")
    k.e("v_lshl_add_u32 v3, v5, 4, v3")
    k.e("s_lshl_b32 s%d, s%d, 15" % (s_t2, s_nt))
    k.e("s_lshl_b32 s%d, s%d, 7" % (s_st, s_ks))
    k.e("s_add_u32 s%d, s%d, s%d" % (s_t2, s_t2, s_st))
    for i in range(4):
        k.e("buffer_load_dwordx4 %s, v3, %s, s%d offen offset:%d" % (vr(8 + 4 * i, 4), sr(SW, 4), s_t2, 32 * i))
    k.e("v_lshlrev_b32 v6, 4, v1")
    k.e("s_lshl_b32 s%d, s%d, 12" % (s_t, s_t))
    k.e("v_mov_b32 v7, 0x3f803f80")
    for r in range(24, 28):
        k.e("v_mov_b32 v%d, 0" % r)
    k.e("v_lshlrev_b32 v28, 4, v4")
    k.e("v_lshl_add_u32 v28, v5, 3, v28")
    k.e("s_lshl_b32 s%d, s%d, 9" % (s_t2, s_nt))
    k.e("s_lshl_b32 s%d, s%d, 16" % (s_st, s_ks))
    k.e("s_add_u32 s%d, s%d, s%d" % (s_t2, s_t2, s_st))
    k.e("s_add_u32 s%d, s%d, 32768" % (s_st, s_t2))
    for i in range(4):
        k.e("s_waitcnt vmcnt(3)")
        k.e("buffer_store_dwordx4 %s, v6, %s, s%d offen offset:%d" % (vr(8 + 4 * i, 4), sr(SO, 4), s_t, 1024 * i))
        a = 24 + 2 * (i >> 1)
        for j in range(4):
            k.e("v_dot2_f32_bf16 v%d, v%d, v7, v%d" % (a, 8 + 4 * i + j, a))
            k.e("v_dot2_f32_bf16 v%d, v%d, v%d, v%d" % (a + 1, 8 + 4 * i + j, 8 + 4 * i + j, a + 1))
    k.e("s_nop 3")
    k.e("buffer_store_dwordx2 v[24:25], v28, %s, s%d offen" % (sr(SS, 4), s_t2))
    k.e("buffer_store_dwordx2 v[26:27], v28, %s, s%d offen" % (sr(SS, 4), s_st))
    k.end()
    return k, NWG, 256, 65536 + 1024


def lngemm(name, xoff, stoff, wsoff, csoff, N, kind):
    NCB = N // 256
    NWG = 32 * NCB
    k = K(name, 256, 256)
    k.prologue(NWG)
    SX, SW, SO, SB, SS, SC = 28, 32, 36, 40, 44, 64
    s_rb, s_cb, s_w, s_t, s_wbase, s_t2, s_scale, s_obase, s_nb = 48, 49, 50, 51, 52, 54, 55, 56, 57
    STL = 65536
    magic = (1 << 32) // NCB + 1
    k.e("s_lshr_b32 s%d, s2, 3" % s_t2)
    k.e("s_mov_b32 s%d, %s" % (s_t, hx(magic)))
    k.e("s_mul_hi_u32 s%d, s%d, s%d" % (s_rb, s_t2, s_t))
    k.e("s_mul_i32 s%d, s%d, %d" % (s_t, s_rb, NCB))
    k.e("s_sub_u32 s%d, s%d, s%d" % (s_cb, s_t2, s_t))
    k.e("s_and_b32 s%d, s2, 7" % s_t)
    k.e("s_lshl_b32 s%d, s%d, 2" % (s_t, s_t))
    k.e("s_add_u32 s%d, s%d, s%d" % (s_rb, s_rb, s_t))
    k.e("v_lshrrev_b32 v2, 6, v0")
    k.e("v_and_b32 v1, 63, v0")
    k.e("v_lshrrev_b32 v5, 5, v1")
    k.e("v_readfirstlane_b32 s%d, v2" % s_w)
    k.e("v_lshlrev_b32 v3, 4, v1")
    k.e("s_waitcnt lgkmcnt(0)")
    k.srd(SX, P_WS, xoff, S * D * 2)
    k.srd(SW, P_WS, wsoff, D * N * 2)
    k.srd(SS, P_WS, stoff, S * 256)
    k.srd(SC, P_WS, csoff, N * 4)
    k.e("s_lshl_b32 s%d, s%d, 16" % (s_t, s_rb))
    k.e("s_lshl_b32 s%d, s%d, 14" % (s_t2, s_w))
    k.e("s_add_u32 s%d, s%d, s%d" % (s_t, s_t, s_t2))
    for q in range(4):
        k.e("s_add_u32 m0, s%d, %d" % (s_t2, q * 4096))
        k.e("s_add_u32 s%d, s%d, %d" % (s_t + 8, s_t, q * 4096))
        for i in range(4):
            k.vmem("buffer_load_dwordx4 v3, %s, s%d offen offset:%d lds" % (sr(SX, 4), s_t + 8, i * 1024), "x")
    k.e("s_lshl_b32 s%d, s%d, 3" % (s_t, s_cb))
    k.e("s_lshl_b32 s%d, s%d, 1" % (s_t2, s_w))
    k.e("s_add_u32 s%d, s%d, s%d" % (s_t, s_t, s_t2))
    k.e("s_lshl_b32 s%d, s%d, 15" % (s_wbase, s_t))

    def wload(ct, ks):
        if ks % 4 == 0:
            k.e("s_add_u32 s%d, s%d, %d" % (s_t + 8, s_wbase, ct * 32768 + ks * 1024))
        k.vmem("buffer_load_dwordx4 %s, v3, %s, s%d offen offset:%d" % (ar((ct * 32 + ks) * 4, 4), sr(SW, 4), s_t + 8, (ks % 4) * 1024), ("w", ct, ks))

    for ks in range(32):
        wload(0, ks)
    ST = 64
    k.e("s_lshl_b32 s%d, s%d, 10" % (s_t, s_rb))
    for i in range(12):
        k.vmem("buffer_load_dwordx4 %s, v3, %s, s%d offen" % (vr(ST + 4 * i, 4), sr(SS, 4), s_t), "st")
        k.e("s_add_u32 s%d, s%d, 32768" % (s_t, s_t))
    ACC = 128
    for r in range(64):
        k.e("v_mov_b32 v%d, 0" % (ACC + r))
    k.vwait("x")
    k.e("s_barrier")
    for i in range(12, 16):
        k.vmem("buffer_load_dwordx4 %s, v3, %s, s%d offen" % (vr(ST + 4 * i, 4), sr(SS, 4), s_t), "st")
        k.e("s_add_u32 s%d, s%d, 32768" % (s_t, s_t))
    k.e("s_lshl_b32 s%d, s%d, 8" % (s_nb, s_cb))
    k.e("s_lshl_b32 s%d, s%d, 6" % (s_t2, s_w))
    k.e("s_add_u32 s%d, s%d, s%d" % (s_nb, s_nb, s_t2))
    FRG = 32

    def xreads(ks):
        b = FRG + 8 * (ks & 3)
        for rt in range(2):
            k.e("ds_read_b128 %s, v3 offset:%d" % (vr(b + 4 * rt, 4), rt * 32768 + ks * 1024))

    def mfma(transposed, rt, ct, ks):
        a = ACC + 16 * (2 * rt + ct)
        b = FRG + 8 * (ks & 3)
        xf, wf = vr(b + 4 * rt, 4), ar((ct * 32 + ks) * 4, 4)
        if transposed:
            k.e("v_mfma_f32_32x32x16_bf16 %s, %s, %s, %s" % (vr(a, 16), wf, xf, vr(a, 16)))
        else:
            k.e("v_mfma_f32_32x32x16_bf16 %s, %s, %s, %s" % (vr(a, 16), xf, wf, vr(a, 16)))

    def stats_math(scale_sgpr):
        k.vwait("st")
        for i in range(4, 32):
            k.e("v_pk_add_f32 %s, %s, %s" % (vr(ST + 2 * (i & 3), 2), vr(ST + 2 * (i & 3), 2), vr(ST + 2 * i, 2)))
        k.e("v_pk_add_f32 v[64:65], v[64:65], v[66:67]")
        k.e("v_pk_add_f32 v[68:69], v[68:69], v[70:71]")
        k.e("v_pk_add_f32 v[64:65], v[64:65], v[68:69]")
        k.e("v_mul_f32 v17, %s, v64" % hx(f32bits(1.0 / D)))
        k.e("v_mul_f32 v16, %s, v65" % hx(f32bits(1.0 / D)))
        k.e("v_fma_f32 v16, -v17, v17, v16")
        k.e("v_max_f32 v16, 0, v16")
        k.e("v_cvt_pk_bf16_f32 v18, v17, v16")
        k.e("v_lshlrev_b32 v17, 16, v18")
        k.e("v_and_b32 v16, 0xffff0000, v18")
        k.e("v_add_f32 v16, %s, v16" % hx(f32bits(1e-5)))
        k.e("v_cvt_pk_bf16_f32 v18, v16, v16")
        k.e("v_and_b32 v16, 0xffff0000, v18")
        k.e("v_sqrt_f32 v16, v16")
        k.e("s_nop 0")
        k.e("v_cvt_pk_bf16_f32 v18, v16, v16")
        k.e("v_and_b32 v16, 0xffff0000, v18")
        k.e("v_rcp_f32 v16, v16")
        k.e("s_nop 0")
        if scale_sgpr is not None:
            k.e("v_mul_f32 v16, s%d, v16" % scale_sgpr)
        k.e("v_mul_f32 v17, v17, v16")
        k.e("v_sub_f32 v17, 0, v17")

    def phase1(transposed):
        xreads(0)
        xreads(1)
        for ks in range(32):
            if ks + 2 < 32:
                xreads(ks + 2)
            if ks < 30:
                wload(1, ks)
            elif ks == 30:
                wload(1, 30)
                wload(1, 31)
            k.vwait(("w", 0, ks), " lgkmcnt(%d)" % (2 * min(2, 31 - ks)))
            for rt in range(2):
                mfma(transposed, rt, 0, ks)

    def phase2(transposed, epi):
        xreads(0)
        xreads(1)
        n = len(epi)
        pos = 0
        for ks in range(32):
            if ks + 2 < 32:
                xreads(ks + 2)
            k.vwait(("w", 1, ks), " lgkmcnt(%d)" % (2 * min(2, 31 - ks)))
            for rt in range(2):
                mfma(transposed, rt, 1, ks)
            if ks >= 3:
                tgt = n * (ks - 2) // 29
                while pos < tgt:
                    ins = epi[pos]
                    if ins.startswith("buffer_store"):
                        k.vmem(ins, "store")
                    else:
                        k.e(ins)
                    pos += 1
        assert pos == n
        k.e("s_nop 15")
        k.e("s_nop 3")

    def emit(lst):
        for ins in lst:
            if ins.startswith("buffer_store"):
                k.vmem(ins, "store")
            else:
                k.e(ins)

    def load_cs_T():
        k.e("v_lshlrev_b32 v28, 4, v5")
        k.e("s_lshl_b32 s%d, s%d, 2" % (s_t, s_nb))
        for ct in range(2):
            for g in range(4):
                k.vmem("buffer_load_dwordx4 %s, v28, %s, s%d offen offset:%d" % (vr(CSR + 16 * ct + 4 * g, 4), sr(SC, 4), s_t, (ct * 32 + 8 * g) * 4), "cs")

    CSR = 192

    def t_ab():
        k.e("v_mov_b32 v18, v16")
        k.e("v_mov_b32 v19, v17")
        k.e("s_nop 1")
        k.e("v_permlane32_swap_b32 v16, v18")
        k.e("v_permlane32_swap_b32 v17, v19")
        k.e("s_nop 1")
        for rt, (aa, bb) in enumerate(((16, 17), (18, 19))):
            k.e("v_mov_b32 v%d, v%d" % (20 + 4 * rt, aa))
            k.e("v_mov_b32 v%d, v%d" % (21 + 4 * rt, aa))
            k.e("v_mov_b32 v%d, v%d" % (22 + 4 * rt, bb))
            k.e("v_mov_b32 v%d, v%d" % (23 + 4 * rt, bb))

    def ln_apply_T(out, r0, rt, csr):
        for p in range(2):
            out.append("v_pk_mul_f32 %s, %s, %s" % (vr(r0 + 2 * p, 2), vr(r0 + 2 * p, 2), vr(20 + 4 * rt, 2)))
        for p in range(2):
            out.append("v_pk_fma_f32 %s, %s, %s, %s" % (vr(r0 + 2 * p, 2), vr(csr + 2 * p, 2), vr(22 + 4 * rt, 2), vr(r0 + 2 * p, 2)))

    if kind == 'qkv':
        lv = k.newlabel("vpath")
        k.e("s_cmp_ge_u32 s%d, 4" % s_cb)
        k.e("s_cbranch_scc1 %s" % lv)
        vm_save = list(k.vm)
        load_cs_T()
        k.e("s_cmp_lt_u32 s%d, 2" % s_cb)
        k.e("s_cselect_b32 s%d, %s, 1.0" % (s_scale, hx(f32bits(QSCALE))))
        k.e("s_cselect_b32 s%d, %d, %d" % (s_obase, WS_Q, WS_K))
        k.srd(SO, P_WS, 0, 6 * MB)
        k.e("s_and_b32 s%d, s%d, 1" % (s_t, s_cb))
        k.e("s_lshl_b32 s%d, s%d, 20" % (s_t, s_t))
        k.e("s_add_u32 s%d, s%d, s%d" % (s_obase, s_obase, s_t))
        k.e("s_lshl_b32 s%d, s%d, 18" % (s_t, s_w))
        k.e("s_add_u32 s%d, s%d, s%d" % (s_obase, s_obase, s_t))
        k.e("s_lshl_b32 s%d, s%d, 11" % (s_t, s_rb))
        k.e("s_add_u32 s%d, s%d, s%d" % (s_obase, s_obase, s_t))
        k.e("v_and_b32 v29, 31, v1")
        k.e("v_lshlrev_b32 v29, 4, v29")
        k.e("v_lshl_add_u32 v29, v5, 3, v29")
        phase1(True)
        stats_math(s_scale)
        t_ab()
        k.vwait("cs")

        def epi_qk(ct):
            out = []
            for rt in range(2):
                a = ACC + 16 * (2 * rt + ct)
                for g in range(4):
                    r0 = a + 4 * g
                    ln_apply_T(out, r0, rt, CSR + 16 * ct + 4 * g)
                    t0 = 8 + 2 * ((rt * 4 + g) & 3)
                    out.append("v_cvt_pk_bf16_f32 v%d, %s, %s" % (t0, vr(r0), vr(r0 + 1)))
                    out.append("v_cvt_pk_bf16_f32 v%d, %s, %s" % (t0 + 1, vr(r0 + 2), vr(r0 + 3)))
                    out.append("s_add_u32 s%d, s%d, %d" % (s_t, s_obase, (ct * 2 + (g >> 1)) * 65536 + rt * 1024 + (g & 1) * 512))
                    out.append("buffer_store_dwordx2 v[%d:%d], v29, %s, s%d offen" % (t0, t0 + 1, sr(SO, 4), s_t))
            return out
        phase2(True, epi_qk(0))
        emit(epi_qk(1))
        k.e("s_endpgm")
        k.label(lv)
        k.vm = vm_save
        k.e("v_and_b32 v28, 31, v1")
        k.e("v_lshlrev_b32 v28, 2, v28")
        k.e("s_lshl_b32 s%d, s%d, 2" % (s_t, s_nb))
        for ct in range(2):
            k.vmem("buffer_load_dword v%d, v28, %s, s%d offen offset:%d" % (30 + ct, sr(SC, 4), s_t, ct * 128), "cs")
        k.srd(SO, P_WS, WS_V, 2 * MB)
        k.e("s_and_b32 s%d, s%d, 1" % (s_t, s_cb))
        k.e("s_lshl_b32 s%d, s%d, 20" % (s_obase, s_t))
        k.e("s_lshl_b32 s%d, s%d, 18" % (s_t, s_w))
        k.e("s_add_u32 s%d, s%d, s%d" % (s_obase, s_obase, s_t))
        k.e("s_lshl_b32 s%d, s%d, 11" % (s_t, s_rb))
        k.e("s_add_u32 s%d, s%d, s%d" % (s_obase, s_obase, s_t))
        k.e("v_bfe_u32 v29, v1, 4, 1")
        k.e("v_lshlrev_b32 v29, 16, v29")
        k.e("v_lshl_add_u32 v29, v5, 8, v29")
        k.e("v_and_b32 v28, 15, v1")
        k.e("v_lshl_add_u32 v29, v28, 4, v29")
        phase1(False)
        stats_math(None)
        k.e("v_lshlrev_b32 v18, 3, v1")
        k.e("s_lshl_b32 s%d, s%d, 9" % (s_t, s_w))
        k.e("s_add_u32 s%d, s%d, %d" % (s_t, s_t, STL))
        k.e("v_add_u32 v18, s%d, v18" % s_t)
        k.e("ds_write_b64 v18, v[16:17]")
        k.e("v_lshlrev_b32 v18, 5, v5")
        k.e("v_add_u32 v18, s%d, v18" % s_t)
        k.e("s_waitcnt lgkmcnt(0)")
        AB = 192
        for rt in range(2):
            for g in range(4):
                for h2 in range(2):
                    k.e("ds_read_b128 %s, v18 offset:%d" % (vr(AB + 32 * rt + 8 * g + 4 * h2, 4), (rt * 32 + 8 * g) * 8 + 16 * h2))
        k.e("s_waitcnt lgkmcnt(0)")
        k.vwait("cs")

        def epi_v(ct):
            out = []
            for rt in range(2):
                a = ACC + 16 * (2 * rt + ct)
                for r in range(16):
                    ab = AB + 32 * rt + 2 * r
                    out.append("v_mul_f32 %s, %s, %s" % (vr(a + r), vr(a + r), vr(ab)))
                    out.append("v_fma_f32 %s, %s, v%d, %s" % (vr(a + r), vr(ab + 1), 30 + ct, vr(a + r)))
                for half in range(2):
                    t0 = 8 + 4 * half
                    for j in range(4):
                        r0 = a + 8 * half + 2 * j
                        out.append("v_cvt_pk_bf16_f32 v%d, %s, %s" % (t0 + j, vr(r0), vr(r0 + 1)))
                    out.append("s_add_u32 s%d, s%d, %d" % (s_t, s_obase, ct * 2 * 65536 + (rt * 2 + half) * 512))
                    out.append("buffer_store_dwordx4 v[%d:%d], v29, %s, s%d offen" % (t0, t0 + 3, sr(SO, 4), s_t))
                    out.append("s_nop 1")
            return out
        phase2(False, epi_v(0))
        emit(epi_v(1))
    else:
        load_cs_T()
        k.srd(SB, P_B1, 0, F * 2)
        k.srd(SO, P_WS, WS_H, S * F * 2)
        k.e("s_lshl_b32 s%d, s%d, 1" % (s_scale, s_nb))
        k.e("v_lshlrev_b32 v28, 3, v5")
        BI = 224
        for ct in range(2):
            for g in range(4):
                k.vmem("buffer_load_dwordx2 %s, v28, %s, s%d offen offset:%d" % (vr(BI + 2 * (4 * ct + g), 2), sr(SB, 4), s_scale, (ct * 32 + 8 * g) * 2), "cs")
        k.e("s_mul_i32 s%d, s%d, %d" % (s_obase, s_rb, 2 * 112 * 1024))
        k.e("s_lshl_b32 s%d, s%d, 6" % (s_t, s_nb))
        k.e("s_add_u32 s%d, s%d, s%d" % (s_obase, s_obase, s_t))
        k.e("v_and_b32 v29, 31, v1")
        k.e("v_lshlrev_b32 v29, 4, v29")
        k.e("v_add_u32 v29, v29, v28")
        phase1(True)
        stats_math(None)
        t_ab()
        k.vwait("cs")
        BF = 96
        for q in range(8):
            for h2 in range(2):
                k.e("v_lshlrev_b32 %s, 16, %s" % (vr(BF + 4 * q + 2 * h2), vr(BI + 2 * q + h2)))
                k.e("v_and_b32 %s, 0xffff0000, %s" % (vr(BF + 4 * q + 2 * h2 + 1), vr(BI + 2 * q + h2)))
        c1 = -2.0 * 0.7978845608028654 * 1.4426950408889634
        k.e("v_mov_b32 v240, %s" % hx(f32bits(c1 * 0.044715)))
        k.e("v_mov_b32 v241, %s" % hx(f32bits(c1 * 0.044715)))
        k.e("v_mov_b32 v242, %s" % hx(f32bits(c1)))
        k.e("v_mov_b32 v243, %s" % hx(f32bits(c1)))
        k.e("v_mov_b32 v244, 1.0")
        k.e("v_mov_b32 v245, 1.0")

        def epi_f(ct):
            out = []
            for rt in range(2):
                a = ACC + 16 * (2 * rt + ct)
                for g in range(4):
                    r0 = a + 4 * g
                    bq = BF + 4 * (4 * ct + g)
                    ln_apply_T(out, r0, rt, CSR + 16 * ct + 4 * g)
                    for p in range(2):
                        out.append("v_pk_add_f32 %s, %s, %s" % (vr(r0 + 2 * p, 2), vr(r0 + 2 * p, 2), vr(bq + 2 * p, 2)))
                    for p in range(2):
                        round_pair(out, r0 + 2 * p, r0 + 2 * p + 1, 8 + p)
                    T = 10
                    for p in range(2):
                        out.append("v_pk_mul_f32 %s, %s, %s" % (vr(T + 2 * p, 2), vr(r0 + 2 * p, 2), vr(r0 + 2 * p, 2)))
                    for p in range(2):
                        out.append("v_pk_fma_f32 %s, %s, v[240:241], v[242:243]" % (vr(T + 2 * p, 2), vr(T + 2 * p, 2)))
                    for p in range(2):
                        out.append("v_pk_mul_f32 %s, %s, %s" % (vr(T + 2 * p, 2), vr(T + 2 * p, 2), vr(r0 + 2 * p, 2)))
                    for j in range(4):
                        out.append("v_exp_f32 v%d, v%d" % (T + j, T + j))
                    out.append("s_nop 0")
                    for p in range(2):
                        out.append("v_pk_add_f32 %s, %s, v[244:245]" % (vr(T + 2 * p, 2), vr(T + 2 * p, 2)))
                    for j in range(4):
                        out.append("v_rcp_f32 v%d, v%d" % (T + j, T + j))
                    out.append("s_nop 0")
                    for p in range(2):
                        out.append("v_pk_mul_f32 %s, %s, %s" % (vr(r0 + 2 * p, 2), vr(r0 + 2 * p, 2), vr(T + 2 * p, 2)))
                    t0 = 246 + 2 * (g & 1)
                    out.append("v_cvt_pk_bf16_f32 v%d, %s, %s" % (t0, vr(r0), vr(r0 + 1)))
                    out.append("v_cvt_pk_bf16_f32 v%d, %s, %s" % (t0 + 1, vr(r0 + 2), vr(r0 + 3)))
                    out.append("s_add_u32 s%d, s%d, %d" % (s_t, s_obase, rt * 112 * 1024 + (ct * 2 + (g >> 1)) * 1024 + (g & 1) * 512))
                    out.append("buffer_store_dwordx2 v[%d:%d], v29, %s, s%d offen" % (t0, t0 + 1, sr(SO, 4), s_t))
            return out
        phase2(True, epi_f(0))
        emit(epi_f(1))
    k.end()
    return k, NWG, 256, 65536 + 2048


def attention(name):
    k = K(name, 128)
    k.prologue(256)
    SQ, SK, SV, SO = 28, 32, 36, 40
    s_h, s_qc, s_w, s_t, s_cnt = 48, 49, 50, 51, 52
    ONES = 131072
    k.e("s_and_b32 s%d, s2, 31" % s_h)
    k.e("s_lshr_b32 s%d, s2, 5" % s_qc)
    k.e("v_lshrrev_b32 v2, 6, v0")
    k.e("v_and_b32 v1, 63, v0")
    k.e("s_nop 0")
    k.e("v_readfirstlane_b32 s%d, v2" % s_w)
    k.e("s_waitcnt lgkmcnt(0)")
    k.srd(SQ, P_WS, WS_Q, 2 * MB)
    k.srd(SK, P_WS, WS_K, 2 * MB)
    k.srd(SV, P_WS, WS_V, 2 * MB)
    k.srd(SO, P_WS, WS_O, 2 * MB)
    k.e("v_lshlrev_b32 v3, 4, v1")
    k.e("s_lshl_b32 s%d, s%d, 16" % (s_t, s_h))
    k.e("s_lshl_b32 s%d, s%d, 13" % (s_cnt, s_qc))
    k.e("s_add_u32 s%d, s%d, s%d" % (s_t, s_t, s_cnt))
    k.e("s_lshl_b32 s%d, s%d, 10" % (s_cnt, s_w))
    k.e("s_add_u32 s%d, s%d, s%d" % (s_t, s_t, s_cnt))
    QF = 28
    k.e("buffer_load_dwordx4 %s, v3, %s, s%d offen" % (vr(QF, 4), sr(SQ, 4), s_t))
    k.e("s_lshl_b32 s%d, s%d, 16" % (s_t, s_h))
    k.e("s_lshl_b32 s%d, s%d, 13" % (s_cnt, s_w))
    k.e("s_add_u32 s%d, s%d, s%d" % (s_t, s_t, s_cnt))
    for which, srd_, base in ((0, SK, 0), (1, SV, 65536)):
        for q in range(2):
            k.e("s_add_u32 m0, s%d, %d" % (s_cnt, base + q * 4096))
            k.e("s_add_u32 s%d, s%d, %d" % (s_cnt + 1, s_t, q * 4096))
            for i in range(4):
                k.e("buffer_load_dwordx4 v3, %s, s%d offen offset:%d lds" % (sr(srd_, 4), s_cnt + 1, i * 1024))
    k.e("v_mov_b32 v8, 0x3f803f80")
    k.e("v_mov_b32 v9, 0x3f803f80")
    k.e("v_lshlrev_b32 v12, 3, v0")
    k.e("v_add_u32 v12, %d, v12" % ONES)
    k.e("ds_write_b64 v12, v[8:9]")
    k.e("v_lshrrev_b32 v5, 5, v1")
    k.e("v_and_b32 v13, 15, v1")
    k.e("v_lshlrev_b32 v13, 4, v13")
    k.e("v_lshl_add_u32 v13, v5, 8, v13")
    k.e("v_add_u32 v14, 65536, v13")
    k.e("v_add_u32 v15, %d, v13" % ONES)
    k.e("v_and_b32 v16, 16, v1")
    k.e("v_cmp_eq_u32 vcc, 0, v16")
    k.e("v_mov_b32 v16, 0")
    k.e("v_mov_b32 v19, 4096")
    k.e("s_nop 1")
    k.e("v_cndmask_b32 v17, v16, v19, vcc")
    k.e("v_cndmask_b32 v18, v15, v14, vcc")
    k.e("v_mov_b32 v22, v3")

    MX = 24
    S4 = [32, 48, 64, 80]
    KF = [96, 100, 104, 108]
    k.e("s_waitcnt vmcnt(8) lgkmcnt(0)")
    k.e("s_barrier")
    for j in range(4):
        k.e("v_mov_b32 v%d, 0xff800000" % (MX + j))
    for j in range(4):
        k.e("ds_read_b128 %s, v22 offset:%d" % (vr(KF[j], 4), j * 1024))
    k.e("s_waitcnt lgkmcnt(2)")
    k.e("v_mfma_f32_32x32x16_bf16 %s, %s, %s, 0" % (vr(S4[0], 16), vr(KF[0], 4), vr(QF, 4)))
    k.e("v_mfma_f32_32x32x16_bf16 %s, %s, %s, 0" % (vr(S4[1], 16), vr(KF[1], 4), vr(QF, 4)))
    k.e("ds_read_b128 %s, v22 offset:4096" % vr(KF[0], 4))
    k.e("ds_read_b128 %s, v22 offset:5120" % vr(KF[1], 4))
    k.e("s_mov_b32 s%d, 0" % s_cnt)

    def maxes(Sx):
        for j in range(8):
            k.e("v_max3_f32 v%d, v%d, %s, %s" % (MX + (j & 3), MX + (j & 3), vr(Sx + 2 * j), vr(Sx + 2 * j + 1)))

    l1 = k.newlabel("p1")
    k.label(l1)
    k.e("s_waitcnt lgkmcnt(2)")
    k.e("v_mfma_f32_32x32x16_bf16 %s, %s, %s, 0" % (vr(S4[2], 16), vr(KF[2], 4), vr(QF, 4)))
    k.e("v_mfma_f32_32x32x16_bf16 %s, %s, %s, 0" % (vr(S4[3], 16), vr(KF[3], 4), vr(QF, 4)))
    k.e("ds_read_b128 %s, v22 offset:6144" % vr(KF[2], 4))
    k.e("ds_read_b128 %s, v22 offset:7168" % vr(KF[3], 4))
    k.e("s_add_u32 s%d, s%d, 1" % (s_cnt, s_cnt))
    k.e("s_cmp_lt_u32 s%d, 16" % s_cnt)
    k.e("v_add_u32 v22, 4096, v22")
    k.e("s_nop 4")
    maxes(S4[0])
    maxes(S4[1])
    k.e("s_waitcnt lgkmcnt(2)")
    k.e("v_mfma_f32_32x32x16_bf16 %s, %s, %s, 0" % (vr(S4[0], 16), vr(KF[0], 4), vr(QF, 4)))
    k.e("v_mfma_f32_32x32x16_bf16 %s, %s, %s, 0" % (vr(S4[1], 16), vr(KF[1], 4), vr(QF, 4)))
    k.e("ds_read_b128 %s, v22 offset:4096" % vr(KF[0], 4))
    k.e("ds_read_b128 %s, v22 offset:5120" % vr(KF[1], 4))
    maxes(S4[2])
    maxes(S4[3])
    k.e("s_cbranch_scc1 %s" % l1)
    k.e("v_max3_f32 v24, v24, v25, v26")
    k.e("v_max_f32 v24, v24, v27")
    k.e("v_mov_b32 v25, v24")
    k.e("s_nop 1")
    k.e("v_permlane32_swap_b32 v24, v25")
    k.e("s_nop 1")
    k.e("v_max_f32 v24, v24, v25")
    k.e("v_sub_f32 v24, 0, v24")
    NEG = 32
    SA, SB_ = 48, 64
    OA = 80
    PK = 96
    KF0, KF1 = 104, 108
    VF = 112
    k.e("s_waitcnt vmcnt(0) lgkmcnt(0)")
    k.e("s_nop 7")
    for j in range(16):
        k.e("v_mov_b32 v%d, v24" % (NEG + j))
    for j in range(16):
        k.e("v_mov_b32 v%d, 0" % (OA + j))
    k.e("s_barrier")
    k.e("v_mov_b32 v22, v3")
    k.e("ds_read_b128 %s, v22" % vr(KF0, 4))
    k.e("ds_read_b128 %s, v22 offset:1024" % vr(KF1, 4))
    for j in range(4):
        k.e("ds_read_b128 %s, v18 offset:%d" % (vr(VF + 4 * j, 4), 512 * j))
    k.e("s_waitcnt lgkmcnt(5)")
    k.e("v_mfma_f32_32x32x16_bf16 %s, %s, %s, %s" % (vr(SA, 16), vr(KF0, 4), vr(QF, 4), vr(NEG, 16)))
    k.e("s_mov_b32 s%d, 0" % s_cnt)
    k.e("s_nop 7")
    k.e("s_nop 3")

    def softmax_pv(Sx, vf0, vf1):
        for j in range(16):
            k.e("v_exp_f32 %s, %s" % (vr(Sx + j), vr(Sx + j)))
            if j % 2 == 1 and j >= 3:
                k.e("v_cvt_pk_bf16_f32 %s, %s, %s" % (vr(PK + (j - 3) // 2), vr(Sx + j - 3), vr(Sx + j - 2)))
        k.e("v_mfma_f32_32x32x16_bf16 %s, %s, %s, %s" % (vr(OA, 16), vr(vf0, 4), vr(PK, 4), vr(OA, 16)))
        k.e("v_cvt_pk_bf16_f32 %s, %s, %s" % (vr(PK + 7), vr(Sx + 14), vr(Sx + 15)))
        k.e("s_nop 1")
        k.e("v_mfma_f32_32x32x16_bf16 %s, %s, %s, %s" % (vr(OA, 16), vr(vf1, 4), vr(PK + 4, 4), vr(OA, 16)))

    l2 = k.newlabel("p2")
    k.label(l2)
    for half in range(2):
        ko = half * 2048
        vo = half * 2048
        k.e("s_waitcnt lgkmcnt(0)")
        k.e("v_mfma_f32_32x32x16_bf16 %s, %s, %s, %s" % (vr(SB_, 16), vr(KF1, 4), vr(QF, 4), vr(NEG, 16)))
        k.e("ds_read_b128 %s, v22 offset:%d" % (vr(KF0, 4), ko + 2048))
        k.e("ds_read_b128 %s, v22 offset:%d" % (vr(KF1, 4), ko + 3072))
        softmax_pv(SA, VF, VF + 4)
        if half == 1:
            k.e("v_add_u32 v18, v18, v17")
            vn = 0
        else:
            vn = 2048
        k.e("ds_read_b128 %s, v18 offset:%d" % (vr(VF, 4), vn))
        k.e("ds_read_b128 %s, v18 offset:%d" % (vr(VF + 4, 4), vn + 512))
        k.e("s_waitcnt lgkmcnt(2)")
        k.e("v_mfma_f32_32x32x16_bf16 %s, %s, %s, %s" % (vr(SA, 16), vr(KF0, 4), vr(QF, 4), vr(NEG, 16)))
        if half == 1:
            k.e("v_add_u32 v22, 4096, v22")
            k.e("s_add_u32 s%d, s%d, 1" % (s_cnt, s_cnt))
            k.e("s_cmp_lt_u32 s%d, 16" % s_cnt)
        softmax_pv(SB_, VF + 8, VF + 12)
        k.e("ds_read_b128 %s, v18 offset:%d" % (vr(VF + 8, 4), vn + 1024))
        k.e("ds_read_b128 %s, v18 offset:%d" % (vr(VF + 12, 4), vn + 1536))
    k.e("s_cbranch_scc1 %s" % l2)
    k.e("s_nop 15")
    k.e("s_nop 3")
    k.e("v_rcp_f32 v24, %s" % vr(OA + 8))
    k.e("s_nop 0")
    for j in range(8):
        k.e("v_mul_f32 %s, %s, v24" % (vr(OA + j), vr(OA + j)))
    for j in range(4):
        k.e("v_cvt_pk_bf16_f32 %s, %s, %s" % (vr(PK + j), vr(OA + 2 * j), vr(OA + 2 * j + 1)))
    k.e("v_and_b32 v24, 31, v1")
    k.e("v_lshlrev_b32 v24, 4, v24")
    k.e("v_lshl_add_u32 v24, v5, 3, v24")
    k.e("s_lshl_b32 s%d, s%d, 18" % (s_t, s_qc))
    k.e("s_lshl_b32 s%d, s%d, 15" % (s_cnt, s_w))
    k.e("s_add_u32 s%d, s%d, s%d" % (s_t, s_t, s_cnt))
    k.e("s_lshl_b32 s%d, s%d, 10" % (s_cnt, s_h))
    k.e("s_add_u32 s%d, s%d, s%d" % (s_t, s_t, s_cnt))
    k.e("buffer_store_dwordx2 %s, v24, %s, s%d offen" % (vr(PK, 2), sr(SO, 4), s_t))
    k.e("buffer_store_dwordx2 %s, v24, %s, s%d offen offset:512" % (vr(PK + 2, 2), sr(SO, 4), s_t))
    k.e("s_waitcnt lgkmcnt(0)")
    k.end()
    return k, 256, 512, 131072 + 8192


def gemm64(name, aoff, Kdim, woff, bias, roff, dst, stoff):
    KS = Kdim // 16
    KSW = KS // 4
    WIN = min(KSW, 14)
    final = dst[0] == 'arg'
    k = K(name, 128, WIN * 16)
    k.prologue(256)
    SA_, SW, SR, SO, SB, SS = 28, 32, 36, 40, 44, 56
    s_rb, s_cb, s_w, s_t, s_t2, s_abase, s_wbase, s_xo = 48, 49, 50, 51, 52, 53, 54, 55
    k.e("s_and_b32 s%d, s2, 7" % s_t)
    k.e("s_lshl_b32 s%d, s%d, 2" % (s_rb, s_t))
    k.e("s_lshr_b32 s%d, s2, 6" % s_t)
    k.e("s_add_u32 s%d, s%d, s%d" % (s_rb, s_rb, s_t))
    k.e("s_lshr_b32 s%d, s2, 3" % s_cb)
    k.e("s_and_b32 s%d, s%d, 7" % (s_cb, s_cb))
    k.e("v_lshrrev_b32 v2, 6, v0")
    k.e("v_and_b32 v1, 63, v0")
    k.e("v_lshlrev_b32 v3, 4, v1")
    k.e("v_readfirstlane_b32 s%d, v2" % s_w)
    k.e("s_waitcnt lgkmcnt(0)")
    k.srd(SA_, P_WS, aoff, S * Kdim * 2)
    k.srd(SW, P_WS, woff, Kdim * D * 2)
    k.srd(SR, P_WS, roff, S * D * 2)
    src_srd(k, SO, dst, S * D * 2)
    if bias is not None:
        k.srd(SB, bias, 0, D * 2)
    if not final:
        k.srd(SS, P_WS, stoff, S * 256)
    k.e("s_mul_i32 s%d, s%d, %d" % (s_t, s_w, KSW * 1024))
    k.e("s_mul_i32 s%d, s%d, %d" % (s_abase, s_rb, 2 * KS * 1024))
    k.e("s_add_u32 s%d, s%d, s%d" % (s_abase, s_abase, s_t))
    k.e("s_mul_i32 s%d, s%d, %d" % (s_wbase, s_cb, 2 * KS * 1024))
    k.e("s_add_u32 s%d, s%d, s%d" % (s_wbase, s_wbase, s_t))
    k.e("v_lshrrev_b32 v15, 5, v1")
    k.e("v_and_b32 v14, 31, v1")
    k.e("v_lshlrev_b32 v16, 4, v14")
    k.e("v_lshl_add_u32 v16, v15, 3, v16")
    k.e("s_lshr_b32 s%d, s%d, 1" % (s_t, s_w))
    k.e("s_lshl_b32 s%d, s%d, 1" % (s_t2, s_rb))
    k.e("s_add_u32 s%d, s%d, s%d" % (s_t, s_t, s_t2))
    k.e("s_lshl_b32 s%d, s%d, 15" % (s_xo, s_t))
    k.e("s_lshl_b32 s%d, s%d, 12" % (s_t2, s_cb))
    k.e("s_add_u32 s%d, s%d, s%d" % (s_xo, s_xo, s_t2))
    k.e("s_and_b32 s%d, s%d, 1" % (s_t2, s_w))
    k.e("s_lshl_b32 s%d, s%d, 11" % (s_t2, s_t2))
    k.e("s_add_u32 s%d, s%d, s%d" % (s_xo, s_xo, s_t2))

    def loads(s):
        slot = (s % WIN) * 16
        for t in range(2):
            k.e("s_add_u32 s%d, s%d, %d" % (s_t, s_abase, (t * KS + s) * 1024))
            k.vmem("buffer_load_dwordx4 %s, v3, %s, s%d offen" % (ar(slot + 4 * t, 4), sr(SA_, 4), s_t), ("m", s))
        for t in range(2):
            k.e("s_add_u32 s%d, s%d, %d" % (s_t, s_wbase, (t * KS + s) * 1024))
            k.vmem("buffer_load_dwordx4 %s, v3, %s, s%d offen" % (ar(slot + 8 + 4 * t, 4), sr(SW, 4), s_t), ("m", s))

    NW0 = min(WIN, 13)
    for s in range(NW0):
        loads(s)
    RX = 40
    for g in range(4):
        k.vmem("buffer_load_dwordx2 %s, v16, %s, s%d offen offset:%d" % (vr(RX + 2 * g, 2), sr(SR, 4), s_xo, 512 * g), "res")
    if bias is not None:
        k.e("s_lshl_b32 s%d, s%d, 7" % (s_t, s_cb))
        k.e("s_and_b32 s%d, s%d, 1" % (s_t2, s_w))
        k.e("s_lshl_b32 s%d, s%d, 6" % (s_t2, s_t2))
        k.e("s_add_u32 s%d, s%d, s%d" % (s_t, s_t, s_t2))
        k.e("v_lshlrev_b32 v17, 3, v15")
        for g in range(4):
            k.vmem("buffer_load_dwordx2 %s, v17, %s, s%d offen offset:%d" % (vr(48 + 2 * g, 2), sr(SB, 4), s_t, 16 * g), "res")
    ACC = 64
    for r in range(64):
        k.e("v_mov_b32 v%d, 0" % (ACC + r))
    issued = NW0
    for s in range(KSW):
        k.vwait(("m", s))
        slot = (s % WIN) * 16
        for rt in range(2):
            for ct in range(2):
                a = ACC + 16 * (2 * rt + ct)
                k.e("v_mfma_f32_32x32x16_bf16 %s, %s, %s, %s" % (vr(a, 16), ar(slot + 8 + 4 * ct, 4), ar(slot + 4 * rt, 4), vr(a, 16)))
        while issued < KSW and issued <= s + WIN - 1 + (1 if s >= 0 else 0) and issued - WIN <= s:
            loads(issued)
            issued += 1
    k.e("s_lshl_b32 s%d, s%d, 12" % (s_t2, s_w))
    k.e("v_add_u32 v4, s%d, v3" % s_t2)
    k.e("s_lshl_b32 s%d, s%d, 14" % (s_t2, s_w))
    k.e("v_add_u32 v6, s%d, v3" % s_t2)
    k.e("s_nop 15")
    for t in range(4):
        for q in range(4):
            k.e("ds_write_b128 v4, %s offset:%d" % (vr(ACC + 16 * t + 4 * q, 4), t * 16384 + q * 1024))
    k.e("s_waitcnt lgkmcnt(0)")
    k.e("s_barrier")
    for w2 in range(4):
        for q in range(4):
            k.e("ds_read_b128 %s, v6 offset:%d" % (vr(ACC + 16 * w2 + 4 * q, 4), w2 * 4096 + q * 1024))
    if final:
        k.e("s_lshr_b32 s%d, s%d, 1" % (s_t, s_w))
        k.e("s_lshl_b32 s%d, s%d, 5" % (s_t, s_t))
        k.e("s_lshl_b32 s%d, s%d, 6" % (s_t2, s_rb))
        k.e("s_add_u32 s%d, s%d, s%d" % (s_t, s_t, s_t2))
        k.e("v_add_u32 v18, s%d, v14" % s_t)
        k.e("v_lshlrev_b32 v18, 10, v18")
        k.e("v_lshl_add_u32 v18, v15, 3, v18")
        k.e("s_lshl_b32 s%d, s%d, 7" % (s_xo, s_cb))
        k.e("s_and_b32 s%d, s%d, 1" % (s_t2, s_w))
        k.e("s_lshl_b32 s%d, s%d, 6" % (s_t2, s_t2))
        k.e("s_add_u32 s%d, s%d, s%d" % (s_xo, s_xo, s_t2))
    else:
        k.e("v_mov_b32 v18, v16")
        k.e("v_mov_b32 v7, 0x3f803f80")
        k.e("v_mov_b32 v8, 0")
        k.e("v_mov_b32 v9, 0")
    k.e("s_waitcnt vmcnt(0) lgkmcnt(0)")
    for r in range(0, 16, 2):
        k.e("v_pk_add_f32 %s, %s, %s" % (vr(ACC + r, 2), vr(ACC + r, 2), vr(ACC + 16 + r, 2)))
        k.e("v_pk_add_f32 %s, %s, %s" % (vr(ACC + 32 + r, 2), vr(ACC + 32 + r, 2), vr(ACC + 48 + r, 2)))
    for r in range(0, 16, 2):
        k.e("v_pk_add_f32 %s, %s, %s" % (vr(ACC + r, 2), vr(ACC + r, 2), vr(ACC + 32 + r, 2)))
    for g in range(4):
        r0 = ACC + 4 * g
        out = []
        for p in range(2):
            round_pair(out, r0 + 2 * p, r0 + 2 * p + 1, 56 + p)
        if bias is not None:
            for p in range(2):
                out.append("v_lshlrev_b32 v58, 16, %s" % vr(48 + 2 * g + p))
                out.append("v_and_b32 v59, 0xffff0000, %s" % vr(48 + 2 * g + p))
                out.append("v_pk_add_f32 %s, %s, v[58:59]" % (vr(r0 + 2 * p, 2), vr(r0 + 2 * p, 2)))
            for p in range(2):
                round_pair(out, r0 + 2 * p, r0 + 2 * p + 1, 56 + p)
        for p in range(2):
            out.append("v_lshlrev_b32 v58, 16, %s" % vr(RX + 2 * g + p))
            out.append("v_and_b32 v59, 0xffff0000, %s" % vr(RX + 2 * g + p))
            out.append("v_pk_add_f32 %s, %s, v[58:59]" % (vr(r0 + 2 * p, 2), vr(r0 + 2 * p, 2)))
        for ins in out:
            k.e(ins)
        o = 20 + 2 * g
        k.e("v_cvt_pk_bf16_f32 v%d, %s, %s" % (o, vr(r0), vr(r0 + 1)))
        k.e("v_cvt_pk_bf16_f32 v%d, %s, %s" % (o + 1, vr(r0 + 2), vr(r0 + 3)))
        k.e("buffer_store_dwordx2 v[%d:%d], v18, %s, s%d offen offset:%d" % (o, o + 1, sr(SO, 4), s_xo, (16 if final else 512) * g))
        if not final:
            for p in range(2):
                k.e("v_dot2_f32_bf16 v8, v%d, v7, v8" % (o + p))
                k.e("v_dot2_f32_bf16 v9, v%d, v%d, v9" % (o + p, o + p))
    if not final:
        k.e("v_mov_b32 v10, v16")
        k.e("s_lshr_b32 s%d, s%d, 1" % (s_t, s_w))
        k.e("s_lshl_b32 s%d, s%d, 1" % (s_t2, s_rb))
        k.e("s_add_u32 s%d, s%d, s%d" % (s_t, s_t, s_t2))
        k.e("s_lshl_b32 s%d, s%d, 9" % (s_t, s_t))
        k.e("s_lshl_b32 s%d, s%d, 16" % (s_t2, s_cb))
        k.e("s_add_u32 s%d, s%d, s%d" % (s_t, s_t, s_t2))
        k.e("s_and_b32 s%d, s%d, 1" % (s_t2, s_w))
        k.e("s_lshl_b32 s%d, s%d, 15" % (s_t2, s_t2))
        k.e("s_add_u32 s%d, s%d, s%d" % (s_t, s_t, s_t2))
        k.e("buffer_store_dwordx2 v[8:9], v10, %s, s%d offen" % (sr(SS, 4), s_t))
    k.end()
    return k, 256, 256, 65536


def build():
    ks = []
    ks.append(prep("prep_kernel"))
    ks.append(lngemm("qkv1_kernel", WS_X0, WS_ST0, WS_WQ, WS_CSQ, 3 * D, 'qkv'))
    ks.append(attention("attn_kernel"))
    ks.append(gemm64("wo1_kernel", WS_O, D, WS_WO, None, WS_X0, ('ws', WS_X1), WS_ST1))
    ks.append(lngemm("ffn1a_kernel", WS_X1, WS_ST1, WS_W1, WS_CS1, F, 'ffn1'))
    ks.append(gemm64("ffn2a_kernel", WS_H, F, WS_W2, P_B2, WS_X1, ('ws', WS_X2), WS_ST2))
    ks.append(lngemm("qkv2_kernel", WS_X2, WS_ST2, WS_WQ, WS_CSQ, 3 * D, 'qkv'))
    ks.append(gemm64("wo2_kernel", WS_O, D, WS_WO, None, WS_X2, ('ws', WS_X3), WS_ST3))
    ks.append(lngemm("ffn1b_kernel", WS_X3, WS_ST3, WS_W1, WS_CS1, F, 'ffn1'))
    ks.append(gemm64("ffn2b_kernel", WS_H, F, WS_W2, P_B2, WS_X3, ('arg', P_OUT), None))
    byname = {k.name: (k, nwg, blk, lds) for k, nwg, blk, lds in ks}
    order = ["prep_kernel", "qkv1_kernel", "attn_kernel", "wo1_kernel", "ffn1a_kernel", "ffn2a_kernel",
             "qkv2_kernel", "attn_kernel", "wo2_kernel", "ffn1b_kernel", "ffn2b_kernel"]
    out = []
    for n in order:
        k, nwg, blk, lds = byname[n]
        out.append("; @launch kernel=%s grid=(%d,1,1) block=(%d,1,1) lds=%d" % (n, nwg, blk, lds))
    out.append('.amdgcn_target "amdgcn-amd-amdhsa--gfx950"')
    out.append(".text")
    for k, _, _, _ in ks:
        out += k.lines
    out.append('.section .rodata,"a"')
    for k, _, _, _ in ks:
        out.append(".p2align 6")
        out.append(k.desc())
    return "\n".join(out) + "\n"


if __name__ == "__main__":
    path = sys.argv[1] if len(sys.argv) > 1 else "cdna_kernels/%s.s" % NAME
    open(path, "w").write(build())
    print("wrote", path)
```

```python
import struct, sys, os, json

NAME = "interleave_layers__softmax_full_mha__dense_activation_gelu__prompt"
S, D, H, DH, F = 2048, 512, 32, 16, 1792
EXP = json.loads(os.environ.get("EXP", "{}"))

MB = 1 << 20
WS_Q, WS_K, WS_V, WS_O, WS_X1, WS_H, WS_X2, WS_X3 = 0, 2 * MB, 4 * MB, 6 * MB, 8 * MB, 10 * MB, 18 * MB, 20 * MB
WS_WQ, WS_WO, WS_W1, WS_W2 = 22 * MB, 24 * MB, 25 * MB, 27 * MB
WS_X0 = 30 * MB
WS_ST0, WS_ST1, WS_ST2, WS_ST3 = 32 * MB, 33 * MB, 34 * MB, 35 * MB
WS_CSQ, WS_CS1 = 36 * MB, 36 * MB + 65536

P_AX, P_WQKV, P_WO, P_BX, P_W1, P_B1, P_W2, P_B2, P_OUT, P_DBG, P_WS = 4, 6, 8, 10, 12, 14, 16, 18, 20, 22, 24
QSCALE = 0.25 * 1.4426950408889634


def f32bits(x):
    return struct.unpack("<I", struct.pack("<f", x))[0]


def hx(x):
    return "0x%08x" % (x & 0xFFFFFFFF)


class K:
    def __init__(self, name, nvgpr, nagpr=0, nsgpr=96):
        self.name = name
        self.lines = []
        self.nvgpr = nvgpr
        self.nagpr = nagpr
        self.nsgpr = nsgpr
        self.lab = 0
        self.vm = []

    def e(self, s):
        self.lines.append("    " + s)

    def label(self, l):
        self.lines.append(l + ":")

    def newlabel(self, stem):
        self.lab += 1
        return "L_%s_%s_%d" % (self.name, stem, self.lab)

    def vmem(self, text, tag=None):
        self.e(text)
        self.vm.append(tag)

    def vwait(self, tag, extra=""):
        idx = max(i for i, t in enumerate(self.vm) if t == tag)
        n = len(self.vm) - 1 - idx
        self.e("s_waitcnt vmcnt(%d)%s" % (min(n, 63), extra))

    def stamp(self):
        if EXP.get("stamp"):
            self.nst = getattr(self, "nst", 0)
            self.e("s_memtime s[%d:%d]" % (70 + 2 * self.nst, 71 + 2 * self.nst))
            self.nst += 1

    def stamp_out(self, s_w):
        if not EXP.get("stamp"):
            return
        sv = self.nst
        self.e("s_waitcnt vmcnt(0)")
        self.stamp()
        self.e("s_waitcnt lgkmcnt(0)")
        self.srd(40, P_WS, 40 * MB, 1 << 20)
        for i in range(self.nst):
            self.e("v_mov_b32 v%d, s%d" % (8 + i, 70 + 2 * i))
        self.e("s_lshl_b32 s51, s2, 8")
        self.e("s_lshl_b32 s54, s%d, 6" % s_w)
        self.e("s_add_u32 s51, s51, s54")
        self.e("v_mov_b32 v30, 0")
        for q in range(3):
            self.e("buffer_store_dwordx4 v[%d:%d], v30, s[40:43], s51 offen offset:%d" % (8 + 4 * q, 11 + 4 * q, 16 * q))
        self.nst = sv

    def prologue(self, nwg):
        self.lines.append(".globl %s" % self.name)
        self.lines.append(".p2align 8")
        self.lines.append(".type %s,@function" % self.name)
        self.lines.append("%s:" % self.name)
        self.e("s_cmp_ge_u32 s2, %d" % nwg)
        self.e("s_cbranch_scc1 L_%s_end" % self.name)
        self.e("s_load_dwordx16 s[4:19], s[0:1], 0")
        self.e("s_load_dwordx4 s[20:23], s[0:1], 64")
        self.e("s_load_dwordx2 s[24:25], s[0:1], 80")

    def srd(self, dst, ptr, off, size):
        if off:
            self.e("s_add_u32 s%d, s%d, %s" % (dst, ptr, hx(off)))
            self.e("s_addc_u32 s%d, s%d, 0" % (dst + 1, ptr + 1))
            self.e("s_and_b32 s%d, s%d, 0xffff" % (dst + 1, dst + 1))
        else:
            self.e("s_mov_b32 s%d, s%d" % (dst, ptr))
            self.e("s_and_b32 s%d, s%d, 0xffff" % (dst + 1, ptr + 1))
        self.e("s_mov_b32 s%d, %s" % (dst + 2, hx(size)))
        self.e("s_mov_b32 s%d, 0x00020000" % (dst + 3))

    def end(self):
        self.label("L_%s_end" % self.name)
        self.e("s_endpgm")

    def desc(self):
        acc = (self.nvgpr + 3) // 4 * 4
        nfv = acc + self.nagpr if self.nagpr else self.nvgpr
        return "\n".join([
            ".amdhsa_kernel %s" % self.name,
            "  .amdhsa_next_free_vgpr %d" % nfv,
            "  .amdhsa_next_free_sgpr %d" % self.nsgpr,
            "  .amdhsa_accum_offset %d" % acc,
            "  .amdhsa_group_segment_fixed_size 0",
            "  .amdhsa_kernarg_size 88",
            "  .amdhsa_user_sgpr_count 2",
            "  .amdhsa_user_sgpr_kernarg_segment_ptr 1",
            "  .amdhsa_system_sgpr_workgroup_id_x 1",
            ".end_amdhsa_kernel",
        ])


def vr(a, n=1):
    return "v%d" % a if n == 1 else "v[%d:%d]" % (a, a + n - 1)


def ar(a, n=1):
    return "a%d" % a if n == 1 else "a[%d:%d]" % (a, a + n - 1)


def sr(a, n=1):
    return "s%d" % a if n == 1 else "s[%d:%d]" % (a, a + n - 1)


def src_srd(k, dst, src, size):
    if src[0] == 'arg':
        k.srd(dst, src[1], 0, size)
    else:
        k.srd(dst, P_WS, src[1], size)


def round_pair(out, lo, hi, tmp):
    out.append("v_cvt_pk_bf16_f32 %s, %s, %s" % (vr(tmp), vr(lo), vr(hi)))
    out.append("v_lshlrev_b32 %s, 16, %s" % (vr(lo), vr(tmp)))
    out.append("v_and_b32 %s, 0xffff0000, %s" % (vr(hi), vr(tmp)))


def prep(name):
    k = K(name, 128)
    segs = [(P_WQKV, D, 3 * D, WS_WQ, 1, 8, WS_CSQ), (P_W1, D, F, WS_W1, 1, 8, WS_CS1),
            (P_WO, D, D, WS_WO, 1, 8, None), (P_W2, F, D, WS_W2, 4, 7, None)]
    nwgs = [(n // 64) * ch for _, kd, n, _, ch, _, _ in segs]
    NX = 128
    NWG = sum(nwgs) + NX
    k.prologue(NWG)
    SW, SO, SS = 28, 32, 36
    s_loc, s_st, s_w, s_t, s_nt, s_ks, s_t2, s_ch, s_lb = 48, 49, 52, 53, 54, 55, 56, 57, 58
    k.e("v_lshrrev_b32 v2, 6, v0")
    k.e("v_and_b32 v1, 63, v0")
    k.e("s_nop 0")
    k.e("v_readfirstlane_b32 s%d, v2" % s_w)
    k.e("s_waitcnt lgkmcnt(0)")
    lx = k.newlabel("xpart")
    k.e("s_cmp_lt_u32 s2, %d" % NX)
    k.e("s_cbranch_scc1 %s" % lx)
    base = NX
    for idx, (ptr, kd, n, wsoff, ch, kpw, cs) in enumerate(segs):
        lnext = k.newlabel("seg")
        if idx < len(segs) - 1:
            k.e("s_cmp_ge_u32 s2, %d" % (base + nwgs[idx]))
            k.e("s_cbranch_scc1 %s" % lnext)
        KSN = kd // 16
        st = n * 2
        k.e("s_sub_u32 s%d, s2, %d" % (s_loc, base))
        k.srd(SW, ptr, 0, kd * n * 2)
        k.srd(SO, P_WS, wsoff, kd * n * 2)
        if ch == 1:
            k.e("s_mov_b32 s%d, s%d" % (s_nt, s_loc))
            k.e("s_mul_i32 s%d, s%d, %d" % (s_ks, s_w, kpw))
        else:
            k.e("s_lshr_b32 s%d, s%d, 2" % (s_nt, s_loc))
            k.e("s_and_b32 s%d, s%d, 3" % (s_ch, s_loc))
            k.e("s_lshl_b32 s%d, s%d, 2" % (s_ch, s_ch))
            k.e("s_add_u32 s%d, s%d, s%d" % (s_ch, s_ch, s_w))
            k.e("s_mul_i32 s%d, s%d, %d" % (s_ks, s_ch, kpw))
        k.e("v_lshrrev_b32 v3, 3, v1")
        k.e("v_mul_u32_u24 v3, %d, v3" % st)
        k.e("v_and_b32 v4, 7, v1")
        k.e("v_lshl_add_u32 v3, v4, 4, v3")
        k.e("s_mul_i32 s%d, s%d, %d" % (s_t2, s_ks, 16 * st))
        k.e("s_lshl_b32 s%d, s%d, 7" % (s_t, s_nt))
        k.e("s_add_u32 s%d, s%d, s%d" % (s_t2, s_t2, s_t))
        k.e("s_lshl_b32 s%d, s%d, 14" % (s_lb, s_w))
        for i in range(2 * kpw):
            k.e("s_add_u32 m0, s%d, %d" % (s_lb, i * 1024))
            k.e("s_nop 0")
            k.e("buffer_load_dwordx4 v3, %s, s%d offen lds" % (sr(SW, 4), s_t2))
            k.e("s_add_u32 s%d, s%d, %d" % (s_t2, s_t2, 8 * st))
        k.e("v_lshrrev_b32 v6, 4, v1")
        k.e("v_and_b32 v7, 15, v1")
        k.e("v_lshrrev_b32 v8, 2, v7")
        k.e("v_and_b32 v9, 3, v7")
        k.e("v_lshrrev_b32 v10, 1, v6")
        k.e("v_lshl_add_u32 v10, v10, 3, v8")
        k.e("v_lshlrev_b32 v10, 7, v10")
        k.e("v_and_b32 v11, 1, v6")
        k.e("v_lshlrev_b32 v11, 5, v11")
        k.e("v_lshl_add_u32 v11, v9, 3, v11")
        k.e("v_add3_u32 v10, v10, v11, s%d" % s_lb)
        k.e("v_lshlrev_b32 v5, 4, v1")
        k.e("s_mul_i32 s%d, s%d, %d" % (s_t, s_nt, 2 * KSN))
        k.e("s_add_u32 s%d, s%d, s%d" % (s_t, s_t, s_ks))
        k.e("s_lshl_b32 s%d, s%d, 10" % (s_t, s_t))
        k.e("v_mov_b32 v12, 0")
        k.e("v_mov_b32 v13, 0")
        k.e("v_mov_b32 v14, 0x3f803f80")
        nst = 0
        for i in range(kpw):
            k.e("s_waitcnt vmcnt(%d)" % (2 * (kpw - 1 - i) + nst))
            for t in range(2):
                d = 16 + 8 * (i & 1) + 4 * t
                k.e("ds_read_b64_tr_b16 %s, v10 offset:%d" % (vr(d, 2), i * 2048 + t * 64))
                k.e("ds_read_b64_tr_b16 %s, v10 offset:%d" % (vr(d + 2, 2), i * 2048 + t * 64 + 512))
            k.e("s_waitcnt lgkmcnt(0)")
            for t in range(2):
                d = 16 + 8 * (i & 1) + 4 * t
                k.e("s_add_u32 s%d, s%d, %d" % (s_t2, s_t, (t * KSN + i) * 1024))
                k.e("buffer_store_dwordx4 %s, v5, %s, s%d offen" % (vr(d, 4), sr(SO, 4), s_t2))
                nst += 1
                if cs is not None:
                    for j in range(4):
                        k.e("v_dot2_f32_bf16 v%d, v%d, v14, v%d" % (12 + t, d + j, 12 + t))
        if cs is not None:
            k.e("s_nop 3")
            k.e("v_mov_b32 v32, v12")
            k.e("v_mov_b32 v33, v13")
            k.e("s_nop 1")
            k.e("v_permlane32_swap_b32 v12, v32")
            k.e("v_permlane32_swap_b32 v13, v33")
            k.e("s_nop 1")
            k.e("v_add_f32 v12, v12, v32")
            k.e("v_add_f32 v13, v13, v33")
            k.e("v_cmp_gt_u32 vcc, 32, v1")
            k.e("s_nop 1")
            k.e("v_cndmask_b32 v12, v13, v12, vcc")
            k.e("v_lshlrev_b32 v7, 2, v1")
            k.e("s_lshl_b32 s%d, s%d, 8" % (s_t, s_w))
            k.e("v_add_u32 v8, s%d, v7" % s_t)
            k.e("v_add_u32 v8, 65536, v8")
            k.e("ds_write_b32 v8, v12")
            k.e("s_waitcnt lgkmcnt(0)")
            k.e("s_barrier")
            k.e("v_add_u32 v8, 65536, v7")
            for w2 in range(4):
                k.e("ds_read_b32 v%d, v8 offset:%d" % (16 + w2, 256 * w2))
            k.e("s_waitcnt lgkmcnt(0)")
            k.e("v_add_f32 v16, v16, v17")
            k.e("v_add_f32 v18, v18, v19")
            k.e("v_add_f32 v16, v16, v18")
            k.srd(SS, P_WS, cs, n * 4)
            k.e("s_lshl_b32 s%d, s%d, 8" % (s_t, s_nt))
            k.e("buffer_store_dword v16, v7, %s, s%d offen" % (sr(SS, 4), s_t))
        k.e("s_endpgm")
        k.label(lnext)
        base += nwgs[idx]
    k.label(lx)
    k.srd(SW, P_AX, 0, S * D * 2)
    k.srd(SO, P_WS, WS_X0, S * D * 2)
    k.srd(SS, P_WS, WS_ST0, S * 256)
    k.e("s_lshl_b32 s%d, s2, 2" % s_t)
    k.e("s_add_u32 s%d, s%d, s%d" % (s_t, s_t, s_w))
    k.e("s_lshr_b32 s%d, s%d, 3" % (s_nt, s_t))
    k.e("s_and_b32 s%d, s%d, 7" % (s_ks, s_t))
    k.e("v_lshrrev_b32 v5, 5, v1")
    k.e("v_and_b32 v4, 31, v1")
    k.e("v_lshlrev_b32 v3, 10, v4")
    k.e("v_lshl_add_u32 v3, v5, 4, v3")
    k.e("s_lshl_b32 s%d, s%d, 15" % (s_t2, s_nt))
    k.e("s_lshl_b32 s%d, s%d, 7" % (s_st, s_ks))
    k.e("s_add_u32 s%d, s%d, s%d" % (s_t2, s_t2, s_st))
    for i in range(4):
        k.e("buffer_load_dwordx4 %s, v3, %s, s%d offen offset:%d" % (vr(8 + 4 * i, 4), sr(SW, 4), s_t2, 32 * i))
    k.e("v_lshlrev_b32 v6, 4, v1")
    k.e("s_lshl_b32 s%d, s%d, 12" % (s_t, s_t))
    k.e("v_mov_b32 v7, 0x3f803f80")
    for r in range(24, 28):
        k.e("v_mov_b32 v%d, 0" % r)
    k.e("v_lshlrev_b32 v28, 4, v4")
    k.e("v_lshl_add_u32 v28, v5, 3, v28")
    k.e("s_lshl_b32 s%d, s%d, 9" % (s_t2, s_nt))
    k.e("s_lshl_b32 s%d, s%d, 16" % (s_st, s_ks))
    k.e("s_add_u32 s%d, s%d, s%d" % (s_t2, s_t2, s_st))
    k.e("s_add_u32 s%d, s%d, 32768" % (s_st, s_t2))
    for i in range(4):
        k.e("s_waitcnt vmcnt(3)")
        k.e("buffer_store_dwordx4 %s, v6, %s, s%d offen offset:%d" % (vr(8 + 4 * i, 4), sr(SO, 4), s_t, 1024 * i))
        a = 24 + 2 * (i >> 1)
        for j in range(4):
            k.e("v_dot2_f32_bf16 v%d, v%d, v7, v%d" % (a, 8 + 4 * i + j, a))
            k.e("v_dot2_f32_bf16 v%d, v%d, v%d, v%d" % (a + 1, 8 + 4 * i + j, 8 + 4 * i + j, a + 1))
    k.e("s_nop 3")
    k.e("buffer_store_dwordx2 v[24:25], v28, %s, s%d offen" % (sr(SS, 4), s_t2))
    k.e("buffer_store_dwordx2 v[26:27], v28, %s, s%d offen" % (sr(SS, 4), s_st))
    k.end()
    return k, NWG, 256, 65536 + 1024


def lngemm(name, xoff, stoff, wsoff, csoff, N, kind):
    NCB = N // 256
    NWG = 32 * NCB
    k = K(name, 256, 256)
    k.prologue(NWG)
    SX, SW, SO, SB, SS, SC = 28, 32, 36, 40, 44, 64
    s_rb, s_cb, s_w, s_t, s_wbase, s_t2, s_scale, s_obase, s_nb = 48, 49, 50, 51, 52, 54, 55, 56, 57
    STL = 65536
    magic = (1 << 32) // NCB + 1
    k.e("s_lshr_b32 s%d, s2, 3" % s_t2)
    k.e("s_mov_b32 s%d, %s" % (s_t, hx(magic)))
    k.e("s_mul_hi_u32 s%d, s%d, s%d" % (s_rb, s_t2, s_t))
    k.e("s_mul_i32 s%d, s%d, %d" % (s_t, s_rb, NCB))
    k.e("s_sub_u32 s%d, s%d, s%d" % (s_cb, s_t2, s_t))
    k.e("s_and_b32 s%d, s2, 7" % s_t)
    k.e("s_lshl_b32 s%d, s%d, 2" % (s_t, s_t))
    k.e("s_add_u32 s%d, s%d, s%d" % (s_rb, s_rb, s_t))
    k.e("v_lshrrev_b32 v2, 6, v0")
    k.e("v_and_b32 v1, 63, v0")
    k.e("v_lshrrev_b32 v5, 5, v1")
    k.e("v_readfirstlane_b32 s%d, v2" % s_w)
    k.e("v_lshlrev_b32 v3, 4, v1")
    k.e("s_waitcnt lgkmcnt(0)")
    k.srd(SX, P_WS, xoff, S * D * 2)
    k.srd(SW, P_WS, wsoff, D * N * 2)
    k.srd(SS, P_WS, stoff, S * 256)
    k.srd(SC, P_WS, csoff, N * 4)
    k.stamp()
    k.e("s_lshl_b32 s%d, s%d, 16" % (s_t, s_rb))
    k.e("s_lshl_b32 s%d, s%d, 14" % (s_t2, s_w))
    k.e("s_add_u32 s%d, s%d, s%d" % (s_t, s_t, s_t2))
    for q in range(4):
        k.e("s_add_u32 m0, s%d, %d" % (s_t2, q * 4096))
        k.e("s_add_u32 s%d, s%d, %d" % (s_t + 8, s_t, q * 4096))
        for i in range(4):
            k.vmem("buffer_load_dwordx4 v3, %s, s%d offen offset:%d lds" % (sr(SX, 4), s_t + 8, i * 1024), "x")
    k.e("s_lshl_b32 s%d, s%d, 3" % (s_t, s_cb))
    k.e("s_lshl_b32 s%d, s%d, 1" % (s_t2, s_w))
    k.e("s_add_u32 s%d, s%d, s%d" % (s_t, s_t, s_t2))
    k.e("s_lshl_b32 s%d, s%d, 15" % (s_wbase, s_t))

    def wload(ct, ks):
        sg = s_t + 10 + ct
        if ks % 4 == 0:
            k.e("s_add_u32 s%d, s%d, %d" % (sg, s_wbase, ct * 32768 + ks * 1024))
        k.vmem("buffer_load_dwordx4 %s, v3, %s, s%d offen offset:%d" % (ar((ct * 32 + ks) * 4, 4), sr(SW, 4), sg, (ks % 4) * 1024), ("w", ct, ks))

    LA = EXP.get("la", 8)
    for ks in range(LA):
        wload(0, ks)
    ST = 64
    ACC = 128
    for r in range(64):
        k.e("v_mov_b32 v%d, 0" % (ACC + r))
    k.stamp()
    k.vwait("x")
    k.e("s_barrier")
    k.stamp()

    def stload(i):
        if i == 0:
            k.e("s_lshl_b32 s%d, s%d, 10" % (s_t + 9, s_rb))
        k.vmem("buffer_load_dwordx4 %s, v3, %s, s%d offen" % (vr(ST + 4 * i, 4), sr(SS, 4), s_t + 9), "st")
        k.e("s_add_u32 s%d, s%d, 32768" % (s_t + 9, s_t + 9))
    k.e("s_lshl_b32 s%d, s%d, 8" % (s_nb, s_cb))
    k.e("s_lshl_b32 s%d, s%d, 6" % (s_t2, s_w))
    k.e("s_add_u32 s%d, s%d, s%d" % (s_nb, s_nb, s_t2))
    FRG = 32

    def xreads(ks):
        b = FRG + 8 * (ks & 3)
        for rt in range(2):
            k.e("ds_read_b128 %s, v3 offset:%d" % (vr(b + 4 * rt, 4), rt * 32768 + ks * 1024))

    def mfma(transposed, rt, ct, ks):
        a = ACC + 16 * (2 * rt + ct)
        b = FRG + 8 * (ks & 3)
        xf, wf = vr(b + 4 * rt, 4), ar((ct * 32 + ks) * 4, 4)
        if transposed:
            k.e("v_mfma_f32_32x32x16_bf16 %s, %s, %s, %s" % (vr(a, 16), wf, xf, vr(a, 16)))
        else:
            k.e("v_mfma_f32_32x32x16_bf16 %s, %s, %s, %s" % (vr(a, 16), xf, wf, vr(a, 16)))

    def stats_math(scale_sgpr):
        k.vwait("st")
        for i in range(4, 32):
            k.e("v_pk_add_f32 %s, %s, %s" % (vr(ST + 2 * (i & 3), 2), vr(ST + 2 * (i & 3), 2), vr(ST + 2 * i, 2)))
        k.e("v_pk_add_f32 v[64:65], v[64:65], v[66:67]")
        k.e("v_pk_add_f32 v[68:69], v[68:69], v[70:71]")
        k.e("v_pk_add_f32 v[64:65], v[64:65], v[68:69]")
        k.e("v_mul_f32 v17, %s, v64" % hx(f32bits(1.0 / D)))
        k.e("v_mul_f32 v16, %s, v65" % hx(f32bits(1.0 / D)))
        k.e("v_fma_f32 v16, -v17, v17, v16")
        k.e("v_max_f32 v16, 0, v16")
        k.e("v_cvt_pk_bf16_f32 v18, v17, v16")
        k.e("v_lshlrev_b32 v17, 16, v18")
        k.e("v_and_b32 v16, 0xffff0000, v18")
        k.e("v_add_f32 v16, %s, v16" % hx(f32bits(1e-5)))
        k.e("v_cvt_pk_bf16_f32 v18, v16, v16")
        k.e("v_and_b32 v16, 0xffff0000, v18")
        k.e("v_sqrt_f32 v16, v16")
        k.e("s_nop 0")
        k.e("v_cvt_pk_bf16_f32 v18, v16, v16")
        k.e("v_and_b32 v16, 0xffff0000, v18")
        k.e("v_rcp_f32 v16, v16")
        k.e("s_nop 0")
        if scale_sgpr is not None:
            k.e("v_mul_f32 v16, s%d, v16" % scale_sgpr)
        k.e("v_mul_f32 v17, v17, v16")
        k.e("v_sub_f32 v17, 0, v17")

    def phase1(transposed):
        xreads(0)
        xreads(1)
        for ks in range(32):
            if ks + 2 < 32:
                xreads(ks + 2)
            if ks + LA < 32:
                wload(0, ks + LA)
            else:
                wload(1, ks + LA - 32)
            if 8 <= ks < 24:
                stload(ks - 8)
            k.vwait(("w", 0, ks), " lgkmcnt(%d)" % (2 * min(2, 31 - ks)))
            for rt in range(2):
                mfma(transposed, rt, 0, ks)

    def phase2(transposed, epi):
        xreads(0)
        xreads(1)
        n = len(epi)
        pos = 0
        for ks in range(32):
            if ks + 2 < 32:
                xreads(ks + 2)
            if ks + LA < 32:
                wload(1, ks + LA)
            k.vwait(("w", 1, ks), " lgkmcnt(%d)" % (2 * min(2, 31 - ks)))
            for rt in range(2):
                mfma(transposed, rt, 1, ks)
            if ks >= 3:
                tgt = n * (ks - 2) // 29
                while pos < tgt:
                    ins = epi[pos]
                    if ins.startswith("buffer_store"):
                        k.vmem(ins, "store")
                    else:
                        k.e(ins)
                    pos += 1
        assert pos == n
        k.e("s_nop 15")
        k.e("s_nop 3")

    def emit(lst):
        for ins in lst:
            if ins.startswith("buffer_store"):
                k.vmem(ins, "store")
            else:
                k.e(ins)

    def load_cs_T():
        k.e("v_lshlrev_b32 v28, 4, v5")
        k.e("s_lshl_b32 s%d, s%d, 2" % (s_t, s_nb))
        for ct in range(2):
            for g in range(4):
                k.vmem("buffer_load_dwordx4 %s, v28, %s, s%d offen offset:%d" % (vr(CSR + 16 * ct + 4 * g, 4), sr(SC, 4), s_t, (ct * 32 + 8 * g) * 4), "cs")

    CSR = 192

    def t_ab():
        k.e("v_mov_b32 v18, v16")
        k.e("v_mov_b32 v19, v17")
        k.e("s_nop 1")
        k.e("v_permlane32_swap_b32 v16, v18")
        k.e("v_permlane32_swap_b32 v17, v19")
        k.e("s_nop 1")
        for rt, (aa, bb) in enumerate(((16, 17), (18, 19))):
            k.e("v_mov_b32 v%d, v%d" % (20 + 4 * rt, aa))
            k.e("v_mov_b32 v%d, v%d" % (21 + 4 * rt, aa))
            k.e("v_mov_b32 v%d, v%d" % (22 + 4 * rt, bb))
            k.e("v_mov_b32 v%d, v%d" % (23 + 4 * rt, bb))

    def ln_apply_T(out, r0, rt, csr):
        for p in range(2):
            out.append("v_pk_mul_f32 %s, %s, %s" % (vr(r0 + 2 * p, 2), vr(r0 + 2 * p, 2), vr(20 + 4 * rt, 2)))
        for p in range(2):
            out.append("v_pk_fma_f32 %s, %s, %s, %s" % (vr(r0 + 2 * p, 2), vr(csr + 2 * p, 2), vr(22 + 4 * rt, 2), vr(r0 + 2 * p, 2)))

    if kind == 'qkv':
        lv = k.newlabel("vpath")
        k.e("s_cmp_ge_u32 s%d, 4" % s_cb)
        k.e("s_cbranch_scc1 %s" % lv)
        vm_save = list(k.vm)
        load_cs_T()
        k.e("s_cmp_lt_u32 s%d, 2" % s_cb)
        k.e("s_cselect_b32 s%d, %s, 1.0" % (s_scale, hx(f32bits(QSCALE))))
        k.e("s_cselect_b32 s%d, %d, %d" % (s_obase, WS_Q, WS_K))
        k.srd(SO, P_WS, 0, 6 * MB)
        k.e("s_and_b32 s%d, s%d, 1" % (s_t, s_cb))
        k.e("s_lshl_b32 s%d, s%d, 20" % (s_t, s_t))
        k.e("s_add_u32 s%d, s%d, s%d" % (s_obase, s_obase, s_t))
        k.e("s_lshl_b32 s%d, s%d, 18" % (s_t, s_w))
        k.e("s_add_u32 s%d, s%d, s%d" % (s_obase, s_obase, s_t))
        k.e("s_lshl_b32 s%d, s%d, 11" % (s_t, s_rb))
        k.e("s_add_u32 s%d, s%d, s%d" % (s_obase, s_obase, s_t))
        k.e("v_and_b32 v29, 31, v1")
        k.e("v_lshlrev_b32 v29, 4, v29")
        k.e("v_lshl_add_u32 v29, v5, 3, v29")
        phase1(True)
        stats_math(s_scale)
        t_ab()
        k.vwait("cs")

        def epi_qk(ct):
            out = []
            for rt in range(2):
                a = ACC + 16 * (2 * rt + ct)
                for g in range(4):
                    r0 = a + 4 * g
                    ln_apply_T(out, r0, rt, CSR + 16 * ct + 4 * g)
                    t0 = 8 + 2 * ((rt * 4 + g) & 3)
                    out.append("v_cvt_pk_bf16_f32 v%d, %s, %s" % (t0, vr(r0), vr(r0 + 1)))
                    out.append("v_cvt_pk_bf16_f32 v%d, %s, %s" % (t0 + 1, vr(r0 + 2), vr(r0 + 3)))
                    out.append("s_add_u32 s%d, s%d, %d" % (s_t, s_obase, (ct * 2 + (g >> 1)) * 65536 + rt * 1024 + (g & 1) * 512))
                    out.append("buffer_store_dwordx2 v[%d:%d], v29, %s, s%d offen" % (t0, t0 + 1, sr(SO, 4), s_t))
            return out
        phase2(True, epi_qk(0))
        emit(epi_qk(1))
        k.e("s_endpgm")
        k.label(lv)
        k.vm = vm_save
        k.e("v_and_b32 v28, 31, v1")
        k.e("v_lshlrev_b32 v28, 2, v28")
        k.e("s_lshl_b32 s%d, s%d, 2" % (s_t, s_nb))
        for ct in range(2):
            k.vmem("buffer_load_dword v%d, v28, %s, s%d offen offset:%d" % (30 + ct, sr(SC, 4), s_t, ct * 128), "cs")
        k.srd(SO, P_WS, WS_V, 2 * MB)
        k.e("s_and_b32 s%d, s%d, 1" % (s_t, s_cb))
        k.e("s_lshl_b32 s%d, s%d, 20" % (s_obase, s_t))
        k.e("s_lshl_b32 s%d, s%d, 18" % (s_t, s_w))
        k.e("s_add_u32 s%d, s%d, s%d" % (s_obase, s_obase, s_t))
        k.e("s_lshl_b32 s%d, s%d, 11" % (s_t, s_rb))
        k.e("s_add_u32 s%d, s%d, s%d" % (s_obase, s_obase, s_t))
        k.e("v_bfe_u32 v29, v1, 4, 1")
        k.e("v_lshlrev_b32 v29, 16, v29")
        k.e("v_lshl_add_u32 v29, v5, 8, v29")
        k.e("v_and_b32 v28, 15, v1")
        k.e("v_lshl_add_u32 v29, v28, 4, v29")
        phase1(False)
        stats_math(None)
        k.e("v_lshlrev_b32 v18, 3, v1")
        k.e("s_lshl_b32 s%d, s%d, 9" % (s_t, s_w))
        k.e("s_add_u32 s%d, s%d, %d" % (s_t, s_t, STL))
        k.e("v_add_u32 v18, s%d, v18" % s_t)
        k.e("ds_write_b64 v18, v[16:17]")
        k.e("v_lshlrev_b32 v18, 5, v5")
        k.e("v_add_u32 v18, s%d, v18" % s_t)
        k.e("s_waitcnt lgkmcnt(0)")
        AB = 192
        for rt in range(2):
            for g in range(4):
                for h2 in range(2):
                    k.e("ds_read_b128 %s, v18 offset:%d" % (vr(AB + 32 * rt + 8 * g + 4 * h2, 4), (rt * 32 + 8 * g) * 8 + 16 * h2))
        k.e("s_waitcnt lgkmcnt(0)")
        k.vwait("cs")

        def epi_v(ct):
            out = []
            for rt in range(2):
                a = ACC + 16 * (2 * rt + ct)
                for r in range(16):
                    ab = AB + 32 * rt + 2 * r
                    out.append("v_mul_f32 %s, %s, %s" % (vr(a + r), vr(a + r), vr(ab)))
                    out.append("v_fma_f32 %s, %s, v%d, %s" % (vr(a + r), vr(ab + 1), 30 + ct, vr(a + r)))
                for half in range(2):
                    t0 = 8 + 4 * half
                    for j in range(4):
                        r0 = a + 8 * half + 2 * j
                        out.append("v_cvt_pk_bf16_f32 v%d, %s, %s" % (t0 + j, vr(r0), vr(r0 + 1)))
                    out.append("s_add_u32 s%d, s%d, %d" % (s_t, s_obase, ct * 2 * 65536 + (rt * 2 + half) * 512))
                    out.append("buffer_store_dwordx4 v[%d:%d], v29, %s, s%d offen" % (t0, t0 + 3, sr(SO, 4), s_t))
                    out.append("s_nop 1")
            return out
        phase2(False, epi_v(0))
        emit(epi_v(1))
    else:
        load_cs_T()
        k.srd(SB, P_B1, 0, F * 2)
        k.srd(SO, P_WS, WS_H, S * F * 2)
        k.e("s_lshl_b32 s%d, s%d, 1" % (s_scale, s_nb))
        k.e("v_lshlrev_b32 v28, 3, v5")
        BI = 224
        for ct in range(2):
            for g in range(4):
                k.vmem("buffer_load_dwordx2 %s, v28, %s, s%d offen offset:%d" % (vr(BI + 2 * (4 * ct + g), 2), sr(SB, 4), s_scale, (ct * 32 + 8 * g) * 2), "cs")
        k.e("s_mul_i32 s%d, s%d, %d" % (s_obase, s_rb, 2 * 112 * 1024))
        k.e("s_lshl_b32 s%d, s%d, 6" % (s_t, s_nb))
        k.e("s_add_u32 s%d, s%d, s%d" % (s_obase, s_obase, s_t))
        k.e("v_and_b32 v29, 31, v1")
        k.e("v_lshlrev_b32 v29, 4, v29")
        k.e("v_add_u32 v29, v29, v28")
        phase1(True)
        k.stamp()
        stats_math(None)
        t_ab()
        k.vwait("cs")
        BF = 96
        for q in range(8):
            for h2 in range(2):
                k.e("v_lshlrev_b32 %s, 16, %s" % (vr(BF + 4 * q + 2 * h2), vr(BI + 2 * q + h2)))
                k.e("v_and_b32 %s, 0xffff0000, %s" % (vr(BF + 4 * q + 2 * h2 + 1), vr(BI + 2 * q + h2)))
        c1 = -2.0 * 0.7978845608028654 * 1.4426950408889634
        k.e("v_mov_b32 v240, %s" % hx(f32bits(c1 * 0.044715)))
        k.e("v_mov_b32 v241, %s" % hx(f32bits(c1 * 0.044715)))
        k.e("v_mov_b32 v242, %s" % hx(f32bits(c1)))
        k.e("v_mov_b32 v243, %s" % hx(f32bits(c1)))
        k.e("v_mov_b32 v244, 1.0")
        k.e("v_mov_b32 v245, 1.0")

        def epi_f(ct):
            out = []
            for rt in range(2):
                a = ACC + 16 * (2 * rt + ct)
                for g in range(4):
                    r0 = a + 4 * g
                    bq = BF + 4 * (4 * ct + g)
                    ln_apply_T(out, r0, rt, CSR + 16 * ct + 4 * g)
                    for p in range(2):
                        out.append("v_pk_add_f32 %s, %s, %s" % (vr(r0 + 2 * p, 2), vr(r0 + 2 * p, 2), vr(bq + 2 * p, 2)))
                    for p in range(2):
                        round_pair(out, r0 + 2 * p, r0 + 2 * p + 1, 8 + p)
                    T = 10
                    for p in range(2):
                        out.append("v_pk_mul_f32 %s, %s, %s" % (vr(T + 2 * p, 2), vr(r0 + 2 * p, 2), vr(r0 + 2 * p, 2)))
                    for p in range(2):
                        out.append("v_pk_fma_f32 %s, %s, v[240:241], v[242:243]" % (vr(T + 2 * p, 2), vr(T + 2 * p, 2)))
                    for p in range(2):
                        out.append("v_pk_mul_f32 %s, %s, %s" % (vr(T + 2 * p, 2), vr(T + 2 * p, 2), vr(r0 + 2 * p, 2)))
                    for j in range(4):
                        out.append("v_exp_f32 v%d, v%d" % (T + j, T + j))
                    out.append("s_nop 0")
                    for p in range(2):
                        out.append("v_pk_add_f32 %s, %s, v[244:245]" % (vr(T + 2 * p, 2), vr(T + 2 * p, 2)))
                    for j in range(4):
                        out.append("v_rcp_f32 v%d, v%d" % (T + j, T + j))
                    out.append("s_nop 0")
                    for p in range(2):
                        out.append("v_pk_mul_f32 %s, %s, %s" % (vr(r0 + 2 * p, 2), vr(r0 + 2 * p, 2), vr(T + 2 * p, 2)))
                    t0 = 246 + 2 * (g & 1)
                    out.append("v_cvt_pk_bf16_f32 v%d, %s, %s" % (t0, vr(r0), vr(r0 + 1)))
                    out.append("v_cvt_pk_bf16_f32 v%d, %s, %s" % (t0 + 1, vr(r0 + 2), vr(r0 + 3)))
                    out.append("s_add_u32 s%d, s%d, %d" % (s_t, s_obase, rt * 112 * 1024 + (ct * 2 + (g >> 1)) * 1024 + (g & 1) * 512))
                    out.append("buffer_store_dwordx2 v[%d:%d], v29, %s, s%d offen" % (t0, t0 + 1, sr(SO, 4), s_t))
            return out
        k.stamp()
        phase2(True, epi_f(0))
        k.stamp()
        emit(epi_f(1))
        k.stamp()
        k.stamp_out(s_w)
    k.end()
    return k, NWG, 256, 65536 + 2048


def attention(name):
    k = K(name, 128)
    k.prologue(256)
    SQ, SK, SV, SO = 28, 32, 36, 40
    s_h, s_qc, s_w, s_t, s_cnt = 48, 49, 50, 51, 52
    ONES = 131072
    k.e("s_and_b32 s%d, s2, 31" % s_h)
    k.e("s_lshr_b32 s%d, s2, 5" % s_qc)
    k.e("v_lshrrev_b32 v2, 6, v0")
    k.e("v_and_b32 v1, 63, v0")
    k.e("s_nop 0")
    k.e("v_readfirstlane_b32 s%d, v2" % s_w)
    k.e("s_waitcnt lgkmcnt(0)")
    k.srd(SQ, P_WS, WS_Q, 2 * MB)
    k.srd(SK, P_WS, WS_K, 2 * MB)
    k.srd(SV, P_WS, WS_V, 2 * MB)
    k.srd(SO, P_WS, WS_O, 2 * MB)
    k.e("v_lshlrev_b32 v3, 4, v1")
    k.e("s_lshl_b32 s%d, s%d, 16" % (s_t, s_h))
    k.e("s_lshl_b32 s%d, s%d, 13" % (s_cnt, s_qc))
    k.e("s_add_u32 s%d, s%d, s%d" % (s_t, s_t, s_cnt))
    k.e("s_lshl_b32 s%d, s%d, 10" % (s_cnt, s_w))
    k.e("s_add_u32 s%d, s%d, s%d" % (s_t, s_t, s_cnt))
    QF = 28
    k.e("buffer_load_dwordx4 %s, v3, %s, s%d offen" % (vr(QF, 4), sr(SQ, 4), s_t))
    k.e("s_lshl_b32 s%d, s%d, 16" % (s_t, s_h))
    k.e("s_lshl_b32 s%d, s%d, 13" % (s_cnt, s_w))
    k.e("s_add_u32 s%d, s%d, s%d" % (s_t, s_t, s_cnt))
    for which, srd_, base in ((0, SK, 0), (1, SV, 65536)):
        for q in range(2):
            k.e("s_add_u32 m0, s%d, %d" % (s_cnt, base + q * 4096))
            k.e("s_add_u32 s%d, s%d, %d" % (s_cnt + 1, s_t, q * 4096))
            for i in range(4):
                k.e("buffer_load_dwordx4 v3, %s, s%d offen offset:%d lds" % (sr(srd_, 4), s_cnt + 1, i * 1024))
    k.e("v_mov_b32 v8, 0x3f803f80")
    k.e("v_mov_b32 v9, 0x3f803f80")
    k.e("v_lshlrev_b32 v12, 3, v0")
    k.e("v_add_u32 v12, %d, v12" % ONES)
    k.e("ds_write_b64 v12, v[8:9]")
    k.e("v_lshrrev_b32 v5, 5, v1")
    k.e("v_and_b32 v13, 15, v1")
    k.e("v_lshlrev_b32 v13, 4, v13")
    k.e("v_lshl_add_u32 v13, v5, 8, v13")
    k.e("v_add_u32 v14, 65536, v13")
    k.e("v_add_u32 v15, %d, v13" % ONES)
    k.e("v_and_b32 v16, 16, v1")
    k.e("v_cmp_eq_u32 vcc, 0, v16")
    k.e("v_mov_b32 v16, 0")
    k.e("v_mov_b32 v19, 4096")
    k.e("s_nop 1")
    k.e("v_cndmask_b32 v17, v16, v19, vcc")
    k.e("v_cndmask_b32 v18, v15, v14, vcc")
    k.e("v_mov_b32 v22, v3")

    MX = 24
    S4 = [32, 48, 64, 80]
    KF = [96, 100, 104, 108]
    k.e("s_waitcnt vmcnt(8) lgkmcnt(0)")
    k.e("s_barrier")
    for j in range(4):
        k.e("v_mov_b32 v%d, 0xff800000" % (MX + j))
    for j in range(4):
        k.e("ds_read_b128 %s, v22 offset:%d" % (vr(KF[j], 4), j * 1024))
    k.e("s_waitcnt lgkmcnt(2)")
    k.e("v_mfma_f32_32x32x16_bf16 %s, %s, %s, 0" % (vr(S4[0], 16), vr(KF[0], 4), vr(QF, 4)))
    k.e("v_mfma_f32_32x32x16_bf16 %s, %s, %s, 0" % (vr(S4[1], 16), vr(KF[1], 4), vr(QF, 4)))
    k.e("ds_read_b128 %s, v22 offset:4096" % vr(KF[0], 4))
    k.e("ds_read_b128 %s, v22 offset:5120" % vr(KF[1], 4))
    k.e("s_mov_b32 s%d, 0" % s_cnt)

    def maxes(Sx):
        for j in range(8):
            k.e("v_max3_f32 v%d, v%d, %s, %s" % (MX + (j & 3), MX + (j & 3), vr(Sx + 2 * j), vr(Sx + 2 * j + 1)))

    l1 = k.newlabel("p1")
    k.label(l1)
    k.e("s_waitcnt lgkmcnt(2)")
    k.e("v_mfma_f32_32x32x16_bf16 %s, %s, %s, 0" % (vr(S4[2], 16), vr(KF[2], 4), vr(QF, 4)))
    k.e("v_mfma_f32_32x32x16_bf16 %s, %s, %s, 0" % (vr(S4[3], 16), vr(KF[3], 4), vr(QF, 4)))
    k.e("ds_read_b128 %s, v22 offset:6144" % vr(KF[2], 4))
    k.e("ds_read_b128 %s, v22 offset:7168" % vr(KF[3], 4))
    k.e("s_add_u32 s%d, s%d, 1" % (s_cnt, s_cnt))
    k.e("s_cmp_lt_u32 s%d, 16" % s_cnt)
    k.e("v_add_u32 v22, 4096, v22")
    k.e("s_nop 4")
    maxes(S4[0])
    maxes(S4[1])
    k.e("s_waitcnt lgkmcnt(2)")
    k.e("v_mfma_f32_32x32x16_bf16 %s, %s, %s, 0" % (vr(S4[0], 16), vr(KF[0], 4), vr(QF, 4)))
    k.e("v_mfma_f32_32x32x16_bf16 %s, %s, %s, 0" % (vr(S4[1], 16), vr(KF[1], 4), vr(QF, 4)))
    k.e("ds_read_b128 %s, v22 offset:4096" % vr(KF[0], 4))
    k.e("ds_read_b128 %s, v22 offset:5120" % vr(KF[1], 4))
    maxes(S4[2])
    maxes(S4[3])
    k.e("s_cbranch_scc1 %s" % l1)
    k.e("v_max3_f32 v24, v24, v25, v26")
    k.e("v_max_f32 v24, v24, v27")
    k.e("v_mov_b32 v25, v24")
    k.e("s_nop 1")
    k.e("v_permlane32_swap_b32 v24, v25")
    k.e("s_nop 1")
    k.e("v_max_f32 v24, v24, v25")
    k.e("v_sub_f32 v24, 0, v24")
    NEG = 32
    SA, SB_ = 48, 64
    OA = 80
    PK = 96
    KF0, KF1 = 104, 108
    VF = 112
    k.e("s_waitcnt vmcnt(0) lgkmcnt(0)")
    k.e("s_nop 7")
    for j in range(16):
        k.e("v_mov_b32 v%d, v24" % (NEG + j))
    for j in range(16):
        k.e("v_mov_b32 v%d, 0" % (OA + j))
    k.e("s_barrier")
    k.e("v_mov_b32 v22, v3")
    k.e("ds_read_b128 %s, v22" % vr(KF0, 4))
    k.e("ds_read_b128 %s, v22 offset:1024" % vr(KF1, 4))
    for j in range(4):
        k.e("ds_read_b128 %s, v18 offset:%d" % (vr(VF + 4 * j, 4), 512 * j))
    k.e("s_waitcnt lgkmcnt(5)")
    k.e("v_mfma_f32_32x32x16_bf16 %s, %s, %s, %s" % (vr(SA, 16), vr(KF0, 4), vr(QF, 4), vr(NEG, 16)))
    k.e("s_mov_b32 s%d, 0" % s_cnt)
    k.e("s_nop 7")
    k.e("s_nop 3")

    def softmax_pv(Sx, vf0, vf1):
        for j in range(16):
            k.e("v_exp_f32 %s, %s" % (vr(Sx + j), vr(Sx + j)))
            if j % 2 == 1 and j >= 3:
                k.e("v_cvt_pk_bf16_f32 %s, %s, %s" % (vr(PK + (j - 3) // 2), vr(Sx + j - 3), vr(Sx + j - 2)))
        k.e("v_mfma_f32_32x32x16_bf16 %s, %s, %s, %s" % (vr(OA, 16), vr(vf0, 4), vr(PK, 4), vr(OA, 16)))
        k.e("v_cvt_pk_bf16_f32 %s, %s, %s" % (vr(PK + 7), vr(Sx + 14), vr(Sx + 15)))
        k.e("s_nop 1")
        k.e("v_mfma_f32_32x32x16_bf16 %s, %s, %s, %s" % (vr(OA, 16), vr(vf1, 4), vr(PK + 4, 4), vr(OA, 16)))

    l2 = k.newlabel("p2")
    k.label(l2)
    for half in range(2):
        ko = half * 2048
        vo = half * 2048
        k.e("s_waitcnt lgkmcnt(0)")
        k.e("v_mfma_f32_32x32x16_bf16 %s, %s, %s, %s" % (vr(SB_, 16), vr(KF1, 4), vr(QF, 4), vr(NEG, 16)))
        k.e("ds_read_b128 %s, v22 offset:%d" % (vr(KF0, 4), ko + 2048))
        k.e("ds_read_b128 %s, v22 offset:%d" % (vr(KF1, 4), ko + 3072))
        softmax_pv(SA, VF, VF + 4)
        if half == 1:
            k.e("v_add_u32 v18, v18, v17")
            vn = 0
        else:
            vn = 2048
        k.e("ds_read_b128 %s, v18 offset:%d" % (vr(VF, 4), vn))
        k.e("ds_read_b128 %s, v18 offset:%d" % (vr(VF + 4, 4), vn + 512))
        k.e("s_waitcnt lgkmcnt(2)")
        k.e("v_mfma_f32_32x32x16_bf16 %s, %s, %s, %s" % (vr(SA, 16), vr(KF0, 4), vr(QF, 4), vr(NEG, 16)))
        if half == 1:
            k.e("v_add_u32 v22, 4096, v22")
            k.e("s_add_u32 s%d, s%d, 1" % (s_cnt, s_cnt))
            k.e("s_cmp_lt_u32 s%d, 16" % s_cnt)
        softmax_pv(SB_, VF + 8, VF + 12)
        k.e("ds_read_b128 %s, v18 offset:%d" % (vr(VF + 8, 4), vn + 1024))
        k.e("ds_read_b128 %s, v18 offset:%d" % (vr(VF + 12, 4), vn + 1536))
    k.e("s_cbranch_scc1 %s" % l2)
    k.e("s_nop 15")
    k.e("s_nop 3")
    k.e("v_rcp_f32 v24, %s" % vr(OA + 8))
    k.e("s_nop 0")
    for j in range(8):
        k.e("v_mul_f32 %s, %s, v24" % (vr(OA + j), vr(OA + j)))
    for j in range(4):
        k.e("v_cvt_pk_bf16_f32 %s, %s, %s" % (vr(PK + j), vr(OA + 2 * j), vr(OA + 2 * j + 1)))
    k.e("v_and_b32 v24, 31, v1")
    k.e("v_lshlrev_b32 v24, 4, v24")
    k.e("v_lshl_add_u32 v24, v5, 3, v24")
    k.e("s_lshl_b32 s%d, s%d, 18" % (s_t, s_qc))
    k.e("s_lshl_b32 s%d, s%d, 15" % (s_cnt, s_w))
    k.e("s_add_u32 s%d, s%d, s%d" % (s_t, s_t, s_cnt))
    k.e("s_lshl_b32 s%d, s%d, 10" % (s_cnt, s_h))
    k.e("s_add_u32 s%d, s%d, s%d" % (s_t, s_t, s_cnt))
    k.e("buffer_store_dwordx2 %s, v24, %s, s%d offen" % (vr(PK, 2), sr(SO, 4), s_t))
    k.e("buffer_store_dwordx2 %s, v24, %s, s%d offen offset:512" % (vr(PK + 2, 2), sr(SO, 4), s_t))
    k.e("s_waitcnt lgkmcnt(0)")
    k.end()
    return k, 256, 512, 131072 + 8192


def gemm64(name, aoff, Kdim, woff, bias, roff, dst, stoff):
    KS = Kdim // 16
    KSW = KS // 4
    WIN = min(KSW, 14)
    final = dst[0] == 'arg'
    k = K(name, 128, WIN * 16)
    k.prologue(256)
    SA_, SW, SR, SO, SB, SS = 28, 32, 36, 40, 44, 56
    s_rb, s_cb, s_w, s_t, s_t2, s_abase, s_wbase, s_xo = 48, 49, 50, 51, 52, 53, 54, 55
    k.e("s_and_b32 s%d, s2, 7" % s_t)
    k.e("s_lshl_b32 s%d, s%d, 2" % (s_rb, s_t))
    k.e("s_lshr_b32 s%d, s2, 6" % s_t)
    k.e("s_add_u32 s%d, s%d, s%d" % (s_rb, s_rb, s_t))
    k.e("s_lshr_b32 s%d, s2, 3" % s_cb)
    k.e("s_and_b32 s%d, s%d, 7" % (s_cb, s_cb))
    k.e("v_lshrrev_b32 v2, 6, v0")
    k.e("v_and_b32 v1, 63, v0")
    k.e("v_lshlrev_b32 v3, 4, v1")
    k.e("v_readfirstlane_b32 s%d, v2" % s_w)
    k.e("s_waitcnt lgkmcnt(0)")
    k.srd(SA_, P_WS, aoff, S * Kdim * 2)
    k.srd(SW, P_WS, woff, Kdim * D * 2)
    k.srd(SR, P_WS, roff, S * D * 2)
    src_srd(k, SO, dst, S * D * 2)
    if bias is not None:
        k.srd(SB, bias, 0, D * 2)
    if not final:
        k.srd(SS, P_WS, stoff, S * 256)
    k.e("s_mul_i32 s%d, s%d, %d" % (s_t, s_w, KSW * 1024))
    k.e("s_mul_i32 s%d, s%d, %d" % (s_abase, s_rb, 2 * KS * 1024))
    k.e("s_add_u32 s%d, s%d, s%d" % (s_abase, s_abase, s_t))
    k.e("s_mul_i32 s%d, s%d, %d" % (s_wbase, s_cb, 2 * KS * 1024))
    k.e("s_add_u32 s%d, s%d, s%d" % (s_wbase, s_wbase, s_t))
    k.e("v_lshrrev_b32 v15, 5, v1")
    k.e("v_and_b32 v14, 31, v1")
    k.e("v_lshlrev_b32 v16, 4, v14")
    k.e("v_lshl_add_u32 v16, v15, 3, v16")
    k.e("s_lshr_b32 s%d, s%d, 1" % (s_t, s_w))
    k.e("s_lshl_b32 s%d, s%d, 1" % (s_t2, s_rb))
    k.e("s_add_u32 s%d, s%d, s%d" % (s_t, s_t, s_t2))
    k.e("s_lshl_b32 s%d, s%d, 15" % (s_xo, s_t))
    k.e("s_lshl_b32 s%d, s%d, 12" % (s_t2, s_cb))
    k.e("s_add_u32 s%d, s%d, s%d" % (s_xo, s_xo, s_t2))
    k.e("s_and_b32 s%d, s%d, 1" % (s_t2, s_w))
    k.e("s_lshl_b32 s%d, s%d, 11" % (s_t2, s_t2))
    k.e("s_add_u32 s%d, s%d, s%d" % (s_xo, s_xo, s_t2))

    def loads(s):
        slot = (s % WIN) * 16
        for t in range(2):
            k.e("s_add_u32 s%d, s%d, %d" % (s_t, s_abase, (t * KS + s) * 1024))
            k.vmem("buffer_load_dwordx4 %s, v3, %s, s%d offen" % (ar(slot + 4 * t, 4), sr(SA_, 4), s_t), ("m", s))
        for t in range(2):
            k.e("s_add_u32 s%d, s%d, %d" % (s_t, s_wbase, (t * KS + s) * 1024))
            k.vmem("buffer_load_dwordx4 %s, v3, %s, s%d offen" % (ar(slot + 8 + 4 * t, 4), sr(SW, 4), s_t), ("m", s))

    NW0 = min(WIN, EXP.get("nw0", 6))
    for s in range(NW0):
        loads(s)
    RX = 40
    for g in range(4):
        k.vmem("buffer_load_dwordx2 %s, v16, %s, s%d offen offset:%d" % (vr(RX + 2 * g, 2), sr(SR, 4), s_xo, 512 * g), "res")
    if bias is not None:
        k.e("s_lshl_b32 s%d, s%d, 7" % (s_t, s_cb))
        k.e("s_and_b32 s%d, s%d, 1" % (s_t2, s_w))
        k.e("s_lshl_b32 s%d, s%d, 6" % (s_t2, s_t2))
        k.e("s_add_u32 s%d, s%d, s%d" % (s_t, s_t, s_t2))
        k.e("v_lshlrev_b32 v17, 3, v15")
        for g in range(4):
            k.vmem("buffer_load_dwordx2 %s, v17, %s, s%d offen offset:%d" % (vr(48 + 2 * g, 2), sr(SB, 4), s_t, 16 * g), "res")
    ACC = 64
    for r in range(64):
        k.e("v_mov_b32 v%d, 0" % (ACC + r))
    issued = NW0
    for s in range(KSW):
        k.vwait(("m", s))
        slot = (s % WIN) * 16
        for rt in range(2):
            for ct in range(2):
                a = ACC + 16 * (2 * rt + ct)
                k.e("v_mfma_f32_32x32x16_bf16 %s, %s, %s, %s" % (vr(a, 16), ar(slot + 8 + 4 * ct, 4), ar(slot + 4 * rt, 4), vr(a, 16)))
        nn = 0
        while issued < KSW and issued - WIN <= s and issued <= s + EXP.get("nw0", 6) + 0 and nn < 2:
            loads(issued)
            issued += 1
            nn += 1
    k.e("s_lshl_b32 s%d, s%d, 12" % (s_t2, s_w))
    k.e("v_add_u32 v4, s%d, v3" % s_t2)
    k.e("s_lshl_b32 s%d, s%d, 14" % (s_t2, s_w))
    k.e("v_add_u32 v6, s%d, v3" % s_t2)
    k.e("s_nop 15")
    for t in range(4):
        for q in range(4):
            k.e("ds_write_b128 v4, %s offset:%d" % (vr(ACC + 16 * t + 4 * q, 4), t * 16384 + q * 1024))
    k.e("s_waitcnt lgkmcnt(0)")
    k.e("s_barrier")
    for w2 in range(4):
        for q in range(4):
            k.e("ds_read_b128 %s, v6 offset:%d" % (vr(ACC + 16 * w2 + 4 * q, 4), w2 * 4096 + q * 1024))
    if final:
        k.e("s_lshr_b32 s%d, s%d, 1" % (s_t, s_w))
        k.e("s_lshl_b32 s%d, s%d, 5" % (s_t, s_t))
        k.e("s_lshl_b32 s%d, s%d, 6" % (s_t2, s_rb))
        k.e("s_add_u32 s%d, s%d, s%d" % (s_t, s_t, s_t2))
        k.e("v_add_u32 v18, s%d, v14" % s_t)
        k.e("v_lshlrev_b32 v18, 10, v18")
        k.e("v_lshl_add_u32 v18, v15, 3, v18")
        k.e("s_lshl_b32 s%d, s%d, 7" % (s_xo, s_cb))
        k.e("s_and_b32 s%d, s%d, 1" % (s_t2, s_w))
        k.e("s_lshl_b32 s%d, s%d, 6" % (s_t2, s_t2))
        k.e("s_add_u32 s%d, s%d, s%d" % (s_xo, s_xo, s_t2))
    else:
        k.e("v_mov_b32 v18, v16")
        k.e("v_mov_b32 v7, 0x3f803f80")
        k.e("v_mov_b32 v8, 0")
        k.e("v_mov_b32 v9, 0")
    k.e("s_waitcnt vmcnt(0) lgkmcnt(0)")
    for r in range(0, 16, 2):
        k.e("v_pk_add_f32 %s, %s, %s" % (vr(ACC + r, 2), vr(ACC + r, 2), vr(ACC + 16 + r, 2)))
        k.e("v_pk_add_f32 %s, %s, %s" % (vr(ACC + 32 + r, 2), vr(ACC + 32 + r, 2), vr(ACC + 48 + r, 2)))
    for r in range(0, 16, 2):
        k.e("v_pk_add_f32 %s, %s, %s" % (vr(ACC + r, 2), vr(ACC + r, 2), vr(ACC + 32 + r, 2)))
    for g in range(4):
        r0 = ACC + 4 * g
        out = []
        for p in range(2):
            round_pair(out, r0 + 2 * p, r0 + 2 * p + 1, 56 + p)
        if bias is not None:
            for p in range(2):
                out.append("v_lshlrev_b32 v58, 16, %s" % vr(48 + 2 * g + p))
                out.append("v_and_b32 v59, 0xffff0000, %s" % vr(48 + 2 * g + p))
                out.append("v_pk_add_f32 %s, %s, v[58:59]" % (vr(r0 + 2 * p, 2), vr(r0 + 2 * p, 2)))
            for p in range(2):
                round_pair(out, r0 + 2 * p, r0 + 2 * p + 1, 56 + p)
        for p in range(2):
            out.append("v_lshlrev_b32 v58, 16, %s" % vr(RX + 2 * g + p))
            out.append("v_and_b32 v59, 0xffff0000, %s" % vr(RX + 2 * g + p))
            out.append("v_pk_add_f32 %s, %s, v[58:59]" % (vr(r0 + 2 * p, 2), vr(r0 + 2 * p, 2)))
        for ins in out:
            k.e(ins)
        o = 20 + 2 * g
        k.e("v_cvt_pk_bf16_f32 v%d, %s, %s" % (o, vr(r0), vr(r0 + 1)))
        k.e("v_cvt_pk_bf16_f32 v%d, %s, %s" % (o + 1, vr(r0 + 2), vr(r0 + 3)))
        k.e("buffer_store_dwordx2 v[%d:%d], v18, %s, s%d offen offset:%d" % (o, o + 1, sr(SO, 4), s_xo, (16 if final else 512) * g))
        if not final:
            for p in range(2):
                k.e("v_dot2_f32_bf16 v8, v%d, v7, v8" % (o + p))
                k.e("v_dot2_f32_bf16 v9, v%d, v%d, v9" % (o + p, o + p))
    if not final:
        k.e("v_mov_b32 v10, v16")
        k.e("s_lshr_b32 s%d, s%d, 1" % (s_t, s_w))
        k.e("s_lshl_b32 s%d, s%d, 1" % (s_t2, s_rb))
        k.e("s_add_u32 s%d, s%d, s%d" % (s_t, s_t, s_t2))
        k.e("s_lshl_b32 s%d, s%d, 9" % (s_t, s_t))
        k.e("s_lshl_b32 s%d, s%d, 16" % (s_t2, s_cb))
        k.e("s_add_u32 s%d, s%d, s%d" % (s_t, s_t, s_t2))
        k.e("s_and_b32 s%d, s%d, 1" % (s_t2, s_w))
        k.e("s_lshl_b32 s%d, s%d, 15" % (s_t2, s_t2))
        k.e("s_add_u32 s%d, s%d, s%d" % (s_t, s_t, s_t2))
        k.e("buffer_store_dwordx2 v[8:9], v10, %s, s%d offen" % (sr(SS, 4), s_t))
    k.end()
    return k, 256, 256, 65536


def build():
    ks = []
    ks.append(prep("prep_kernel"))
    ks.append(lngemm("qkv1_kernel", WS_X0, WS_ST0, WS_WQ, WS_CSQ, 3 * D, 'qkv'))
    ks.append(attention("attn_kernel"))
    ks.append(gemm64("wo1_kernel", WS_O, D, WS_WO, None, WS_X0, ('ws', WS_X1), WS_ST1))
    ks.append(lngemm("ffn1a_kernel", WS_X1, WS_ST1, WS_W1, WS_CS1, F, 'ffn1'))
    ks.append(gemm64("ffn2a_kernel", WS_H, F, WS_W2, P_B2, WS_X1, ('ws', WS_X2), WS_ST2))
    ks.append(lngemm("qkv2_kernel", WS_X2, WS_ST2, WS_WQ, WS_CSQ, 3 * D, 'qkv'))
    ks.append(gemm64("wo2_kernel", WS_O, D, WS_WO, None, WS_X2, ('ws', WS_X3), WS_ST3))
    ks.append(lngemm("ffn1b_kernel", WS_X3, WS_ST3, WS_W1, WS_CS1, F, 'ffn1'))
    ks.append(gemm64("ffn2b_kernel", WS_H, F, WS_W2, P_B2, WS_X3, ('arg', P_OUT), None))
    byname = {k.name: (k, nwg, blk, lds) for k, nwg, blk, lds in ks}
    order = ["prep_kernel", "qkv1_kernel", "attn_kernel", "wo1_kernel", "ffn1a_kernel", "ffn2a_kernel",
             "qkv2_kernel", "attn_kernel", "wo2_kernel", "ffn1b_kernel", "ffn2b_kernel"]
    out = []
    for n in order:
        k, nwg, blk, lds = byname[n]
        out.append("; @launch kernel=%s grid=(%d,1,1) block=(%d,1,1) lds=%d" % (n, nwg, blk, lds))
    out.append('.amdgcn_target "amdgcn-amd-amdhsa--gfx950"')
    out.append(".text")
    for k, _, _, _ in ks:
        out += k.lines
    out.append('.section .rodata,"a"')
    for k, _, _, _ in ks:
        out.append(".p2align 6")
        out.append(k.desc())
    return "\n".join(out) + "\n"


if __name__ == "__main__":
    path = sys.argv[1] if len(sys.argv) > 1 else "cdna_kernels/%s.s" % NAME
    open(path, "w").write(build())
    print("wrote", path)
```

```python
import struct, sys, os, json

NAME = "interleave_layers__softmax_full_mha__dense_activation_gelu__prompt"
S, D, H, DH, F = 2048, 512, 32, 16, 1792
EXP = json.loads(os.environ.get("EXP", "{}"))

MB = 1 << 20
WS_Q, WS_K, WS_V, WS_O, WS_X1, WS_H, WS_X2, WS_X3 = 0, 2 * MB, 4 * MB, 6 * MB, 8 * MB, 10 * MB, 18 * MB, 20 * MB
WS_WQ, WS_WO, WS_W1, WS_W2 = 22 * MB, 24 * MB, 25 * MB, 27 * MB
WS_X0 = 30 * MB
WS_ST0, WS_ST1, WS_ST2, WS_ST3 = 32 * MB, 33 * MB, 34 * MB, 35 * MB
WS_CSQ, WS_CS1 = 36 * MB, 36 * MB + 65536

P_AX, P_WQKV, P_WO, P_BX, P_W1, P_B1, P_W2, P_B2, P_OUT, P_DBG, P_WS = 4, 6, 8, 10, 12, 14, 16, 18, 20, 22, 24
QSCALE = 0.25 * 1.4426950408889634


def f32bits(x):
    return struct.unpack("<I", struct.pack("<f", x))[0]


def hx(x):
    return "0x%08x" % (x & 0xFFFFFFFF)


class K:
    def __init__(self, name, nvgpr, nagpr=0, nsgpr=96):
        self.name = name
        self.lines = []
        self.nvgpr = nvgpr
        self.nagpr = nagpr
        self.nsgpr = nsgpr
        self.lab = 0
        self.vm = []

    def e(self, s):
        self.lines.append("    " + s)

    def label(self, l):
        self.lines.append(l + ":")

    def newlabel(self, stem):
        self.lab += 1
        return "L_%s_%s_%d" % (self.name, stem, self.lab)

    def vmem(self, text, tag=None):
        self.e(text)
        self.vm.append(tag)

    def vwait(self, tag, extra=""):
        idx = max(i for i, t in enumerate(self.vm) if t == tag)
        n = len(self.vm) - 1 - idx
        self.e("s_waitcnt vmcnt(%d)%s" % (min(n, 63), extra))

    def stamp(self):
        if EXP.get("stamp"):
            self.nst = getattr(self, "nst", 0)
            self.e("s_memtime s[%d:%d]" % (70 + 2 * self.nst, 71 + 2 * self.nst))
            self.nst += 1

    def stamp_out(self, s_w):
        if not EXP.get("stamp"):
            return
        sv = self.nst
        self.e("s_waitcnt vmcnt(0)")
        self.stamp()
        self.e("s_waitcnt lgkmcnt(0)")
        self.srd(40, P_WS, 40 * MB, 1 << 20)
        for i in range(self.nst):
            self.e("v_mov_b32 v%d, s%d" % (8 + i, 70 + 2 * i))
        self.e("s_lshl_b32 s51, s2, 8")
        self.e("s_lshl_b32 s54, s%d, 6" % s_w)
        self.e("s_add_u32 s51, s51, s54")
        self.e("v_mov_b32 v30, 0")
        for q in range(3):
            self.e("buffer_store_dwordx4 v[%d:%d], v30, s[40:43], s51 offen offset:%d" % (8 + 4 * q, 11 + 4 * q, 16 * q))
        self.nst = sv

    def prologue(self, nwg):
        self.lines.append(".globl %s" % self.name)
        self.lines.append(".p2align 8")
        self.lines.append(".type %s,@function" % self.name)
        self.lines.append("%s:" % self.name)
        self.e("s_cmp_ge_u32 s2, %d" % nwg)
        self.e("s_cbranch_scc1 L_%s_end" % self.name)
        self.e("s_load_dwordx16 s[4:19], s[0:1], 0")
        self.e("s_load_dwordx4 s[20:23], s[0:1], 64")
        self.e("s_load_dwordx2 s[24:25], s[0:1], 80")

    def srd(self, dst, ptr, off, size):
        if off:
            self.e("s_add_u32 s%d, s%d, %s" % (dst, ptr, hx(off)))
            self.e("s_addc_u32 s%d, s%d, 0" % (dst + 1, ptr + 1))
            self.e("s_and_b32 s%d, s%d, 0xffff" % (dst + 1, dst + 1))
        else:
            self.e("s_mov_b32 s%d, s%d" % (dst, ptr))
            self.e("s_and_b32 s%d, s%d, 0xffff" % (dst + 1, ptr + 1))
        self.e("s_mov_b32 s%d, %s" % (dst + 2, hx(size)))
        self.e("s_mov_b32 s%d, 0x00020000" % (dst + 3))

    def end(self):
        self.label("L_%s_end" % self.name)
        self.e("s_endpgm")

    def desc(self):
        acc = (self.nvgpr + 3) // 4 * 4
        nfv = acc + self.nagpr if self.nagpr else self.nvgpr
        return "\n".join([
            ".amdhsa_kernel %s" % self.name,
            "  .amdhsa_next_free_vgpr %d" % nfv,
            "  .amdhsa_next_free_sgpr %d" % self.nsgpr,
            "  .amdhsa_accum_offset %d" % acc,
            "  .amdhsa_group_segment_fixed_size 0",
            "  .amdhsa_kernarg_size 88",
            "  .amdhsa_user_sgpr_count 2",
            "  .amdhsa_user_sgpr_kernarg_segment_ptr 1",
            "  .amdhsa_system_sgpr_workgroup_id_x 1",
            ".end_amdhsa_kernel",
        ])


def vr(a, n=1):
    return "v%d" % a if n == 1 else "v[%d:%d]" % (a, a + n - 1)


def ar(a, n=1):
    return "a%d" % a if n == 1 else "a[%d:%d]" % (a, a + n - 1)


def sr(a, n=1):
    return "s%d" % a if n == 1 else "s[%d:%d]" % (a, a + n - 1)


def src_srd(k, dst, src, size):
    if src[0] == 'arg':
        k.srd(dst, src[1], 0, size)
    else:
        k.srd(dst, P_WS, src[1], size)


def round_pair(out, lo, hi, tmp):
    out.append("v_cvt_pk_bf16_f32 %s, %s, %s" % (vr(tmp), vr(lo), vr(hi)))
    out.append("v_lshlrev_b32 %s, 16, %s" % (vr(lo), vr(tmp)))
    out.append("v_and_b32 %s, 0xffff0000, %s" % (vr(hi), vr(tmp)))


SEG_ALL = [(P_WQKV, D, 3 * D, WS_WQ, 1, 8, WS_CSQ), (P_W1, D, F, WS_W1, 1, 8, WS_CS1),
           (P_WO, D, D, WS_WO, 1, 8, None), (P_W2, F, D, WS_W2, 4, 7, None)]


def seg_wgs(segs):
    return sum((n // 64) * ch for _, kd, n, _, ch, _, _ in segs)


def emit_wsegs(k, segs, NX, s_w):
    nwgs = [(n // 64) * ch for _, kd, n, _, ch, _, _ in segs]
    SW, SO, SS = 28, 32, 36
    s_loc, s_st, s_t, s_nt, s_ks, s_t2, s_ch, s_lb = 80, 81, 83, 84, 85, 86, 87, 88
    base = NX
    for idx, (ptr, kd, n, wsoff, ch, kpw, cs) in enumerate(segs):
        lnext = k.newlabel("seg")
        if idx < len(segs) - 1:
            k.e("s_cmp_ge_u32 s2, %d" % (base + nwgs[idx]))
            k.e("s_cbranch_scc1 %s" % lnext)
        KSN = kd // 16
        st = n * 2
        k.e("s_sub_u32 s%d, s2, %d" % (s_loc, base))
        k.srd(SW, ptr, 0, kd * n * 2)
        k.srd(SO, P_WS, wsoff, kd * n * 2)
        if ch == 1:
            k.e("s_mov_b32 s%d, s%d" % (s_nt, s_loc))
            k.e("s_mul_i32 s%d, s%d, %d" % (s_ks, s_w, kpw))
        else:
            k.e("s_lshr_b32 s%d, s%d, 2" % (s_nt, s_loc))
            k.e("s_and_b32 s%d, s%d, 3" % (s_ch, s_loc))
            k.e("s_lshl_b32 s%d, s%d, 2" % (s_ch, s_ch))
            k.e("s_add_u32 s%d, s%d, s%d" % (s_ch, s_ch, s_w))
            k.e("s_mul_i32 s%d, s%d, %d" % (s_ks, s_ch, kpw))
        k.e("v_lshrrev_b32 v3, 3, v1")
        k.e("v_mul_u32_u24 v3, %d, v3" % st)
        k.e("v_and_b32 v4, 7, v1")
        k.e("v_lshl_add_u32 v3, v4, 4, v3")
        k.e("s_mul_i32 s%d, s%d, %d" % (s_t2, s_ks, 16 * st))
        k.e("s_lshl_b32 s%d, s%d, 7" % (s_t, s_nt))
        k.e("s_add_u32 s%d, s%d, s%d" % (s_t2, s_t2, s_t))
        k.e("s_lshl_b32 s%d, s%d, 14" % (s_lb, s_w))
        for i in range(2 * kpw):
            k.e("s_add_u32 m0, s%d, %d" % (s_lb, i * 1024))
            k.e("s_nop 0")
            k.e("buffer_load_dwordx4 v3, %s, s%d offen lds" % (sr(SW, 4), s_t2))
            k.e("s_add_u32 s%d, s%d, %d" % (s_t2, s_t2, 8 * st))
        k.e("v_lshrrev_b32 v6, 4, v1")
        k.e("v_and_b32 v7, 15, v1")
        k.e("v_lshrrev_b32 v8, 2, v7")
        k.e("v_and_b32 v9, 3, v7")
        k.e("v_lshrrev_b32 v10, 1, v6")
        k.e("v_lshl_add_u32 v10, v10, 3, v8")
        k.e("v_lshlrev_b32 v10, 7, v10")
        k.e("v_and_b32 v11, 1, v6")
        k.e("v_lshlrev_b32 v11, 5, v11")
        k.e("v_lshl_add_u32 v11, v9, 3, v11")
        k.e("v_add3_u32 v10, v10, v11, s%d" % s_lb)
        k.e("v_lshlrev_b32 v5, 4, v1")
        k.e("s_mul_i32 s%d, s%d, %d" % (s_t, s_nt, 2 * KSN))
        k.e("s_add_u32 s%d, s%d, s%d" % (s_t, s_t, s_ks))
        k.e("s_lshl_b32 s%d, s%d, 10" % (s_t, s_t))
        k.e("v_mov_b32 v12, 0")
        k.e("v_mov_b32 v13, 0")
        k.e("v_mov_b32 v14, 0x3f803f80")
        nst = 0
        for i in range(kpw):
            k.e("s_waitcnt vmcnt(%d)" % (2 * (kpw - 1 - i) + nst))
            for t in range(2):
                d = 16 + 8 * (i & 1) + 4 * t
                k.e("ds_read_b64_tr_b16 %s, v10 offset:%d" % (vr(d, 2), i * 2048 + t * 64))
                k.e("ds_read_b64_tr_b16 %s, v10 offset:%d" % (vr(d + 2, 2), i * 2048 + t * 64 + 512))
            k.e("s_waitcnt lgkmcnt(0)")
            for t in range(2):
                d = 16 + 8 * (i & 1) + 4 * t
                k.e("s_add_u32 s%d, s%d, %d" % (s_t2, s_t, (t * KSN + i) * 1024))
                k.e("buffer_store_dwordx4 %s, v5, %s, s%d offen" % (vr(d, 4), sr(SO, 4), s_t2))
                nst += 1
                if cs is not None:
                    for j in range(4):
                        k.e("v_dot2_f32_bf16 v%d, v%d, v14, v%d" % (12 + t, d + j, 12 + t))
        if cs is not None:
            k.e("s_nop 3")
            k.e("v_mov_b32 v32, v12")
            k.e("v_mov_b32 v33, v13")
            k.e("s_nop 1")
            k.e("v_permlane32_swap_b32 v12, v32")
            k.e("v_permlane32_swap_b32 v13, v33")
            k.e("s_nop 1")
            k.e("v_add_f32 v12, v12, v32")
            k.e("v_add_f32 v13, v13, v33")
            k.e("v_cmp_gt_u32 vcc, 32, v1")
            k.e("s_nop 1")
            k.e("v_cndmask_b32 v12, v13, v12, vcc")
            k.e("v_lshlrev_b32 v7, 2, v1")
            k.e("s_lshl_b32 s%d, s%d, 8" % (s_t, s_w))
            k.e("v_add_u32 v8, s%d, v7" % s_t)
            k.e("v_add_u32 v8, 65536, v8")
            k.e("ds_write_b32 v8, v12")
            k.e("s_waitcnt lgkmcnt(0)")
            k.e("s_barrier")
            k.e("v_add_u32 v8, 65536, v7")
            for w2 in range(4):
                k.e("ds_read_b32 v%d, v8 offset:%d" % (16 + w2, 256 * w2))
            k.e("s_waitcnt lgkmcnt(0)")
            k.e("v_add_f32 v16, v16, v17")
            k.e("v_add_f32 v18, v18, v19")
            k.e("v_add_f32 v16, v16, v18")
            k.srd(SS, P_WS, cs, n * 4)
            k.e("s_lshl_b32 s%d, s%d, 8" % (s_t, s_nt))
            k.e("buffer_store_dword v16, v7, %s, s%d offen" % (sr(SS, 4), s_t))
        k.e("s_endpgm")
        k.label(lnext)
        base += nwgs[idx]


def prep(name):
    k = K(name, 128)
    segs = SEG_ALL[:1]
    NX = 128
    NWG = seg_wgs(segs) + NX
    k.prologue(NWG)
    SW, SO, SS = 28, 32, 36
    s_loc, s_st, s_w, s_t, s_nt, s_ks, s_t2, s_ch, s_lb = 48, 49, 52, 53, 54, 55, 56, 57, 58
    k.e("v_lshrrev_b32 v2, 6, v0")
    k.e("v_and_b32 v1, 63, v0")
    k.e("s_nop 0")
    k.e("v_readfirstlane_b32 s%d, v2" % s_w)
    k.e("s_waitcnt lgkmcnt(0)")
    lx = k.newlabel("xpart")
    k.e("s_cmp_lt_u32 s2, %d" % NX)
    k.e("s_cbranch_scc1 %s" % lx)
    emit_wsegs(k, segs, NX, s_w)
    k.label(lx)
    k.srd(SW, P_AX, 0, S * D * 2)
    k.srd(SO, P_WS, WS_X0, S * D * 2)
    k.srd(SS, P_WS, WS_ST0, S * 256)
    k.e("s_lshl_b32 s%d, s2, 2" % s_t)
    k.e("s_add_u32 s%d, s%d, s%d" % (s_t, s_t, s_w))
    k.e("s_lshr_b32 s%d, s%d, 3" % (s_nt, s_t))
    k.e("s_and_b32 s%d, s%d, 7" % (s_ks, s_t))
    k.e("v_lshrrev_b32 v5, 5, v1")
    k.e("v_and_b32 v4, 31, v1")
    k.e("v_lshlrev_b32 v3, 10, v4")
    k.e("v_lshl_add_u32 v3, v5, 4, v3")
    k.e("s_lshl_b32 s%d, s%d, 15" % (s_t2, s_nt))
    k.e("s_lshl_b32 s%d, s%d, 7" % (s_st, s_ks))
    k.e("s_add_u32 s%d, s%d, s%d" % (s_t2, s_t2, s_st))
    for i in range(4):
        k.e("buffer_load_dwordx4 %s, v3, %s, s%d offen offset:%d" % (vr(8 + 4 * i, 4), sr(SW, 4), s_t2, 32 * i))
    k.e("v_lshlrev_b32 v6, 4, v1")
    k.e("s_lshl_b32 s%d, s%d, 12" % (s_t, s_t))
    k.e("v_mov_b32 v7, 0x3f803f80")
    for r in range(24, 28):
        k.e("v_mov_b32 v%d, 0" % r)
    k.e("v_lshlrev_b32 v28, 4, v4")
    k.e("v_lshl_add_u32 v28, v5, 3, v28")
    k.e("s_lshl_b32 s%d, s%d, 9" % (s_t2, s_nt))
    k.e("s_lshl_b32 s%d, s%d, 16" % (s_st, s_ks))
    k.e("s_add_u32 s%d, s%d, s%d" % (s_t2, s_t2, s_st))
    k.e("s_add_u32 s%d, s%d, 32768" % (s_st, s_t2))
    for i in range(4):
        k.e("s_waitcnt vmcnt(3)")
        k.e("buffer_store_dwordx4 %s, v6, %s, s%d offen offset:%d" % (vr(8 + 4 * i, 4), sr(SO, 4), s_t, 1024 * i))
        a = 24 + 2 * (i >> 1)
        for j in range(4):
            k.e("v_dot2_f32_bf16 v%d, v%d, v7, v%d" % (a, 8 + 4 * i + j, a))
            k.e("v_dot2_f32_bf16 v%d, v%d, v%d, v%d" % (a + 1, 8 + 4 * i + j, 8 + 4 * i + j, a + 1))
    k.e("s_nop 3")
    k.e("buffer_store_dwordx2 v[24:25], v28, %s, s%d offen" % (sr(SS, 4), s_t2))
    k.e("buffer_store_dwordx2 v[26:27], v28, %s, s%d offen" % (sr(SS, 4), s_st))
    k.end()
    return k, NWG, 256, 65536 + 1024


def lngemm(name, xoff, stoff, wsoff, csoff, N, kind, extra=None):
    NCB = N // 256
    NWG = 32 * NCB
    NTOT = NWG + (seg_wgs(extra) if extra else 0)
    k = K(name, 256, 256)
    k.prologue(NTOT)
    SX, SW, SO, SB, SS, SC = 28, 32, 36, 40, 44, 64
    s_rb, s_cb, s_w, s_t, s_wbase, s_t2, s_scale, s_obase, s_nb = 48, 49, 50, 51, 52, 54, 55, 56, 57
    STL = 65536
    magic = (1 << 32) // (8 * NCB) + 1
    k.e("s_and_b32 s%d, s2, 7" % s_t)
    k.e("s_mul_i32 s%d, s%d, %d" % (s_t, s_t, 4 * NCB))
    k.e("s_lshr_b32 s%d, s2, 3" % s_t2)
    k.e("s_add_u32 s%d, s%d, s%d" % (s_t2, s_t2, s_t))
    k.e("s_mov_b32 s%d, %s" % (s_t, hx(magic)))
    k.e("s_mul_hi_u32 s%d, s%d, s%d" % (s_rb, s_t2, s_t))
    k.e("s_mul_i32 s%d, s%d, %d" % (s_t, s_rb, 8 * NCB))
    k.e("s_sub_u32 s%d, s%d, s%d" % (s_t2, s_t2, s_t))
    k.e("s_lshr_b32 s%d, s%d, 3" % (s_cb, s_t2))
    k.e("s_and_b32 s%d, s%d, 7" % (s_t2, s_t2))
    k.e("s_lshl_b32 s%d, s%d, 3" % (s_rb, s_rb))
    k.e("s_add_u32 s%d, s%d, s%d" % (s_rb, s_rb, s_t2))
    k.e("v_lshrrev_b32 v2, 6, v0")
    k.e("v_and_b32 v1, 63, v0")
    k.e("v_lshrrev_b32 v5, 5, v1")
    k.e("v_readfirstlane_b32 s%d, v2" % s_w)
    k.e("v_lshlrev_b32 v3, 4, v1")
    k.e("s_waitcnt lgkmcnt(0)")
    if extra:
        lmain = k.newlabel("main")
        k.e("s_cmp_lt_u32 s2, %d" % NWG)
        k.e("s_cbranch_scc1 %s" % lmain)
        emit_wsegs(k, extra, NWG, s_w)
        k.label(lmain)
    k.srd(SX, P_WS, xoff, S * D * 2)
    k.srd(SW, P_WS, wsoff, D * N * 2)
    k.srd(SS, P_WS, stoff, S * 256)
    k.srd(SC, P_WS, csoff, N * 4)
    k.stamp()
    k.e("s_lshl_b32 s%d, s%d, 16" % (s_t, s_rb))
    k.e("s_lshl_b32 s%d, s%d, 14" % (s_t2, s_w))
    k.e("s_add_u32 s%d, s%d, s%d" % (s_t, s_t, s_t2))
    for q in range(4):
        k.e("s_add_u32 m0, s%d, %d" % (s_t2, q * 4096))
        k.e("s_add_u32 s%d, s%d, %d" % (s_t + 8, s_t, q * 4096))
        for i in range(4):
            k.vmem("buffer_load_dwordx4 v3, %s, s%d offen offset:%d lds" % (sr(SX, 4), s_t + 8, i * 1024), "x")
    k.e("s_lshl_b32 s%d, s%d, 3" % (s_t, s_cb))
    k.e("s_lshl_b32 s%d, s%d, 1" % (s_t2, s_w))
    k.e("s_add_u32 s%d, s%d, s%d" % (s_t, s_t, s_t2))
    k.e("s_lshl_b32 s%d, s%d, 15" % (s_wbase, s_t))

    def wload(ct, ks):
        sg = s_t + 10 + ct
        if ks % 4 == 0:
            k.e("s_add_u32 s%d, s%d, %d" % (sg, s_wbase, ct * 32768 + ks * 1024))
        k.vmem("buffer_load_dwordx4 %s, v3, %s, s%d offen offset:%d" % (ar((ct * 32 + ks) * 4, 4), sr(SW, 4), sg, (ks % 4) * 1024), ("w", ct, ks))

    LA = EXP.get("la", 8)
    for ks in range(LA):
        wload(0, ks)
    ST = 64
    ACC = 128
    for r in range(64):
        k.e("v_mov_b32 v%d, 0" % (ACC + r))
    k.stamp()
    k.vwait("x")
    k.e("s_barrier")
    k.stamp()

    def stload(i):
        if i == 0:
            k.e("s_lshl_b32 s%d, s%d, 10" % (s_t + 9, s_rb))
        k.vmem("buffer_load_dwordx4 %s, v3, %s, s%d offen" % (vr(ST + 4 * i, 4), sr(SS, 4), s_t + 9), "st")
        k.e("s_add_u32 s%d, s%d, 32768" % (s_t + 9, s_t + 9))
    k.e("s_lshl_b32 s%d, s%d, 8" % (s_nb, s_cb))
    k.e("s_lshl_b32 s%d, s%d, 6" % (s_t2, s_w))
    k.e("s_add_u32 s%d, s%d, s%d" % (s_nb, s_nb, s_t2))
    FRG = 32

    def xreads(ks):
        b = FRG + 8 * (ks & 3)
        for rt in range(2):
            k.e("ds_read_b128 %s, v3 offset:%d" % (vr(b + 4 * rt, 4), rt * 32768 + ks * 1024))

    def mfma(transposed, rt, ct, ks):
        a = ACC + 16 * (2 * rt + ct)
        b = FRG + 8 * (ks & 3)
        xf, wf = vr(b + 4 * rt, 4), ar((ct * 32 + ks) * 4, 4)
        if transposed:
            k.e("v_mfma_f32_32x32x16_bf16 %s, %s, %s, %s" % (vr(a, 16), wf, xf, vr(a, 16)))
        else:
            k.e("v_mfma_f32_32x32x16_bf16 %s, %s, %s, %s" % (vr(a, 16), xf, wf, vr(a, 16)))

    def stats_math(scale_sgpr):
        k.vwait("st")
        for i in range(4, 32):
            k.e("v_pk_add_f32 %s, %s, %s" % (vr(ST + 2 * (i & 3), 2), vr(ST + 2 * (i & 3), 2), vr(ST + 2 * i, 2)))
        k.e("v_pk_add_f32 v[64:65], v[64:65], v[66:67]")
        k.e("v_pk_add_f32 v[68:69], v[68:69], v[70:71]")
        k.e("v_pk_add_f32 v[64:65], v[64:65], v[68:69]")
        k.e("v_mul_f32 v17, %s, v64" % hx(f32bits(1.0 / D)))
        k.e("v_mul_f32 v16, %s, v65" % hx(f32bits(1.0 / D)))
        k.e("v_fma_f32 v16, -v17, v17, v16")
        k.e("v_max_f32 v16, 0, v16")
        k.e("v_cvt_pk_bf16_f32 v18, v17, v16")
        k.e("v_lshlrev_b32 v17, 16, v18")
        k.e("v_and_b32 v16, 0xffff0000, v18")
        k.e("v_add_f32 v16, %s, v16" % hx(f32bits(1e-5)))
        k.e("v_cvt_pk_bf16_f32 v18, v16, v16")
        k.e("v_and_b32 v16, 0xffff0000, v18")
        k.e("v_sqrt_f32 v16, v16")
        k.e("s_nop 0")
        k.e("v_cvt_pk_bf16_f32 v18, v16, v16")
        k.e("v_and_b32 v16, 0xffff0000, v18")
        k.e("v_rcp_f32 v16, v16")
        k.e("s_nop 0")
        if scale_sgpr is not None:
            k.e("v_mul_f32 v16, s%d, v16" % scale_sgpr)
        k.e("v_mul_f32 v17, v17, v16")
        k.e("v_sub_f32 v17, 0, v17")

    def phase1(transposed):
        xreads(0)
        xreads(1)
        for ks in range(32):
            if ks + 2 < 32:
                xreads(ks + 2)
            if ks + LA < 32:
                wload(0, ks + LA)
            else:
                wload(1, ks + LA - 32)
            if 8 <= ks < 24:
                stload(ks - 8)
            k.vwait(("w", 0, ks), " lgkmcnt(%d)" % (2 * min(2, 31 - ks)))
            for rt in range(2):
                mfma(transposed, rt, 0, ks)

    def phase2(transposed, epi):
        xreads(0)
        xreads(1)
        n = len(epi)
        pos = 0
        for ks in range(32):
            if ks + 2 < 32:
                xreads(ks + 2)
            if ks + LA < 32:
                wload(1, ks + LA)
            k.vwait(("w", 1, ks), " lgkmcnt(%d)" % (2 * min(2, 31 - ks)))
            for rt in range(2):
                mfma(transposed, rt, 1, ks)
            if ks >= 3:
                tgt = n * (ks - 2) // 29
                while pos < tgt:
                    ins = epi[pos]
                    if ins.startswith("buffer_store"):
                        k.vmem(ins, "store")
                    else:
                        k.e(ins)
                    pos += 1
        assert pos == n
        k.e("s_nop 15")
        k.e("s_nop 3")

    def emit(lst):
        for ins in lst:
            if ins.startswith("buffer_store"):
                k.vmem(ins, "store")
            else:
                k.e(ins)

    def load_cs_T():
        k.e("v_lshlrev_b32 v28, 4, v5")
        k.e("s_lshl_b32 s%d, s%d, 2" % (s_t, s_nb))
        for ct in range(2):
            for g in range(4):
                k.vmem("buffer_load_dwordx4 %s, v28, %s, s%d offen offset:%d" % (vr(CSR + 16 * ct + 4 * g, 4), sr(SC, 4), s_t, (ct * 32 + 8 * g) * 4), "cs")

    CSR = 192

    def t_ab():
        k.e("v_mov_b32 v18, v16")
        k.e("v_mov_b32 v19, v17")
        k.e("s_nop 1")
        k.e("v_permlane32_swap_b32 v16, v18")
        k.e("v_permlane32_swap_b32 v17, v19")
        k.e("s_nop 1")
        for rt, (aa, bb) in enumerate(((16, 17), (18, 19))):
            k.e("v_mov_b32 v%d, v%d" % (20 + 4 * rt, aa))
            k.e("v_mov_b32 v%d, v%d" % (21 + 4 * rt, aa))
            k.e("v_mov_b32 v%d, v%d" % (22 + 4 * rt, bb))
            k.e("v_mov_b32 v%d, v%d" % (23 + 4 * rt, bb))

    def ln_apply_T(out, r0, rt, csr):
        for p in range(2):
            out.append("v_pk_mul_f32 %s, %s, %s" % (vr(r0 + 2 * p, 2), vr(r0 + 2 * p, 2), vr(20 + 4 * rt, 2)))
        for p in range(2):
            out.append("v_pk_fma_f32 %s, %s, %s, %s" % (vr(r0 + 2 * p, 2), vr(csr + 2 * p, 2), vr(22 + 4 * rt, 2), vr(r0 + 2 * p, 2)))

    if kind == 'qkv':
        lv = k.newlabel("vpath")
        k.e("s_cmp_ge_u32 s%d, 4" % s_cb)
        k.e("s_cbranch_scc1 %s" % lv)
        vm_save = list(k.vm)
        load_cs_T()
        k.e("s_cmp_lt_u32 s%d, 2" % s_cb)
        k.e("s_cselect_b32 s%d, %s, 1.0" % (s_scale, hx(f32bits(QSCALE))))
        k.e("s_cselect_b32 s%d, %d, %d" % (s_obase, WS_Q, WS_K))
        k.srd(SO, P_WS, 0, 6 * MB)
        k.e("s_and_b32 s%d, s%d, 1" % (s_t, s_cb))
        k.e("s_lshl_b32 s%d, s%d, 20" % (s_t, s_t))
        k.e("s_add_u32 s%d, s%d, s%d" % (s_obase, s_obase, s_t))
        k.e("s_lshl_b32 s%d, s%d, 18" % (s_t, s_w))
        k.e("s_add_u32 s%d, s%d, s%d" % (s_obase, s_obase, s_t))
        k.e("s_lshl_b32 s%d, s%d, 11" % (s_t, s_rb))
        k.e("s_add_u32 s%d, s%d, s%d" % (s_obase, s_obase, s_t))
        k.e("v_and_b32 v29, 31, v1")
        k.e("v_lshlrev_b32 v29, 4, v29")
        k.e("v_lshl_add_u32 v29, v5, 3, v29")
        phase1(True)
        stats_math(s_scale)
        t_ab()
        k.vwait("cs")

        def epi_qk(ct):
            out = []
            for rt in range(2):
                a = ACC + 16 * (2 * rt + ct)
                for g in range(4):
                    r0 = a + 4 * g
                    ln_apply_T(out, r0, rt, CSR + 16 * ct + 4 * g)
                    t0 = 8 + 2 * ((rt * 4 + g) & 3)
                    out.append("v_cvt_pk_bf16_f32 v%d, %s, %s" % (t0, vr(r0), vr(r0 + 1)))
                    out.append("v_cvt_pk_bf16_f32 v%d, %s, %s" % (t0 + 1, vr(r0 + 2), vr(r0 + 3)))
                    out.append("s_add_u32 s%d, s%d, %d" % (s_t, s_obase, (ct * 2 + (g >> 1)) * 65536 + rt * 1024 + (g & 1) * 512))
                    out.append("buffer_store_dwordx2 v[%d:%d], v29, %s, s%d offen" % (t0, t0 + 1, sr(SO, 4), s_t))
            return out
        phase2(True, epi_qk(0))
        emit(epi_qk(1))
        k.e("s_endpgm")
        k.label(lv)
        k.vm = vm_save
        k.e("v_and_b32 v28, 31, v1")
        k.e("v_lshlrev_b32 v28, 2, v28")
        k.e("s_lshl_b32 s%d, s%d, 2" % (s_t, s_nb))
        for ct in range(2):
            k.vmem("buffer_load_dword v%d, v28, %s, s%d offen offset:%d" % (30 + ct, sr(SC, 4), s_t, ct * 128), "cs")
        k.srd(SO, P_WS, WS_V, 2 * MB)
        k.e("s_and_b32 s%d, s%d, 1" % (s_t, s_cb))
        k.e("s_lshl_b32 s%d, s%d, 20" % (s_obase, s_t))
        k.e("s_lshl_b32 s%d, s%d, 18" % (s_t, s_w))
        k.e("s_add_u32 s%d, s%d, s%d" % (s_obase, s_obase, s_t))
        k.e("s_lshl_b32 s%d, s%d, 11" % (s_t, s_rb))
        k.e("s_add_u32 s%d, s%d, s%d" % (s_obase, s_obase, s_t))
        k.e("v_bfe_u32 v29, v1, 4, 1")
        k.e("v_lshlrev_b32 v29, 16, v29")
        k.e("v_lshl_add_u32 v29, v5, 8, v29")
        k.e("v_and_b32 v28, 15, v1")
        k.e("v_lshl_add_u32 v29, v28, 4, v29")
        phase1(False)
        stats_math(None)
        k.e("v_lshlrev_b32 v18, 3, v1")
        k.e("s_lshl_b32 s%d, s%d, 9" % (s_t, s_w))
        k.e("s_add_u32 s%d, s%d, %d" % (s_t, s_t, STL))
        k.e("v_add_u32 v18, s%d, v18" % s_t)
        k.e("ds_write_b64 v18, v[16:17]")
        k.e("v_lshlrev_b32 v18, 5, v5")
        k.e("v_add_u32 v18, s%d, v18" % s_t)
        k.e("s_waitcnt lgkmcnt(0)")
        AB = 192
        for rt in range(2):
            for g in range(4):
                for h2 in range(2):
                    k.e("ds_read_b128 %s, v18 offset:%d" % (vr(AB + 32 * rt + 8 * g + 4 * h2, 4), (rt * 32 + 8 * g) * 8 + 16 * h2))
        k.e("s_waitcnt lgkmcnt(0)")
        k.vwait("cs")

        def epi_v(ct):
            out = []
            for rt in range(2):
                a = ACC + 16 * (2 * rt + ct)
                for r in range(16):
                    ab = AB + 32 * rt + 2 * r
                    out.append("v_mul_f32 %s, %s, %s" % (vr(a + r), vr(a + r), vr(ab)))
                    out.append("v_fma_f32 %s, %s, v%d, %s" % (vr(a + r), vr(ab + 1), 30 + ct, vr(a + r)))
                for half in range(2):
                    t0 = 8 + 4 * half
                    for j in range(4):
                        r0 = a + 8 * half + 2 * j
                        out.append("v_cvt_pk_bf16_f32 v%d, %s, %s" % (t0 + j, vr(r0), vr(r0 + 1)))
                    out.append("s_add_u32 s%d, s%d, %d" % (s_t, s_obase, ct * 2 * 65536 + (rt * 2 + half) * 512))
                    out.append("buffer_store_dwordx4 v[%d:%d], v29, %s, s%d offen" % (t0, t0 + 3, sr(SO, 4), s_t))
                    out.append("s_nop 1")
            return out
        phase2(False, epi_v(0))
        emit(epi_v(1))
    else:
        load_cs_T()
        k.srd(SB, P_B1, 0, F * 2)
        k.srd(SO, P_WS, WS_H, S * F * 2)
        k.e("s_lshl_b32 s%d, s%d, 1" % (s_scale, s_nb))
        k.e("v_lshlrev_b32 v28, 3, v5")
        BI = 224
        for ct in range(2):
            for g in range(4):
                k.vmem("buffer_load_dwordx2 %s, v28, %s, s%d offen offset:%d" % (vr(BI + 2 * (4 * ct + g), 2), sr(SB, 4), s_scale, (ct * 32 + 8 * g) * 2), "cs")
        k.e("s_mul_i32 s%d, s%d, %d" % (s_obase, s_rb, 2 * 112 * 1024))
        k.e("s_lshl_b32 s%d, s%d, 6" % (s_t, s_nb))
        k.e("s_add_u32 s%d, s%d, s%d" % (s_obase, s_obase, s_t))
        k.e("v_and_b32 v29, 31, v1")
        k.e("v_lshlrev_b32 v29, 4, v29")
        k.e("v_add_u32 v29, v29, v28")
        phase1(True)
        k.stamp()
        stats_math(None)
        t_ab()
        k.vwait("cs")
        BF = 96
        for q in range(8):
            for h2 in range(2):
                k.e("v_lshlrev_b32 %s, 16, %s" % (vr(BF + 4 * q + 2 * h2), vr(BI + 2 * q + h2)))
                k.e("v_and_b32 %s, 0xffff0000, %s" % (vr(BF + 4 * q + 2 * h2 + 1), vr(BI + 2 * q + h2)))
        c1 = -2.0 * 0.7978845608028654 * 1.4426950408889634
        k.e("v_mov_b32 v240, %s" % hx(f32bits(c1 * 0.044715)))
        k.e("v_mov_b32 v241, %s" % hx(f32bits(c1 * 0.044715)))
        k.e("v_mov_b32 v242, %s" % hx(f32bits(c1)))
        k.e("v_mov_b32 v243, %s" % hx(f32bits(c1)))
        k.e("v_mov_b32 v244, 1.0")
        k.e("v_mov_b32 v245, 1.0")

        def epi_f(ct):
            out = []
            for rt in range(2):
                a = ACC + 16 * (2 * rt + ct)
                for g in range(4):
                    r0 = a + 4 * g
                    bq = BF + 4 * (4 * ct + g)
                    ln_apply_T(out, r0, rt, CSR + 16 * ct + 4 * g)
                    for p in range(2):
                        out.append("v_pk_add_f32 %s, %s, %s" % (vr(r0 + 2 * p, 2), vr(r0 + 2 * p, 2), vr(bq + 2 * p, 2)))
                    for p in range(2):
                        round_pair(out, r0 + 2 * p, r0 + 2 * p + 1, 8 + p)
                    T = 10
                    for p in range(2):
                        out.append("v_pk_mul_f32 %s, %s, %s" % (vr(T + 2 * p, 2), vr(r0 + 2 * p, 2), vr(r0 + 2 * p, 2)))
                    for p in range(2):
                        out.append("v_pk_fma_f32 %s, %s, v[240:241], v[242:243]" % (vr(T + 2 * p, 2), vr(T + 2 * p, 2)))
                    for p in range(2):
                        out.append("v_pk_mul_f32 %s, %s, %s" % (vr(T + 2 * p, 2), vr(T + 2 * p, 2), vr(r0 + 2 * p, 2)))
                    for j in range(4):
                        out.append("v_exp_f32 v%d, v%d" % (T + j, T + j))
                    out.append("s_nop 0")
                    for p in range(2):
                        out.append("v_pk_add_f32 %s, %s, v[244:245]" % (vr(T + 2 * p, 2), vr(T + 2 * p, 2)))
                    for j in range(4):
                        out.append("v_rcp_f32 v%d, v%d" % (T + j, T + j))
                    out.append("s_nop 0")
                    for p in range(2):
                        out.append("v_pk_mul_f32 %s, %s, %s" % (vr(r0 + 2 * p, 2), vr(r0 + 2 * p, 2), vr(T + 2 * p, 2)))
                    t0 = 246 + 2 * (g & 1)
                    out.append("v_cvt_pk_bf16_f32 v%d, %s, %s" % (t0, vr(r0), vr(r0 + 1)))
                    out.append("v_cvt_pk_bf16_f32 v%d, %s, %s" % (t0 + 1, vr(r0 + 2), vr(r0 + 3)))
                    out.append("s_add_u32 s%d, s%d, %d" % (s_t, s_obase, rt * 112 * 1024 + (ct * 2 + (g >> 1)) * 1024 + (g & 1) * 512))
                    out.append("buffer_store_dwordx2 v[%d:%d], v29, %s, s%d offen" % (t0, t0 + 1, sr(SO, 4), s_t))
            return out
        k.stamp()
        phase2(True, epi_f(0))
        k.stamp()
        emit(epi_f(1))
        k.stamp()
        k.stamp_out(s_w)
    k.end()
    return k, NTOT, 256, 65536 + 2048


def lngemm8(name, xoff, stoff, wsoff, csoff, N, kind, extra=None):
    NCB = N // 256
    NWG = 32 * NCB
    NTOT = NWG + (seg_wgs(extra) if extra else 0)
    k = K(name, 128, 128)
    k.prologue(NTOT)
    e = k.e
    SX, SW, SO, SB, SS, SC = 28, 32, 36, 40, 44, 64
    s_rb, s_cb, s_w, s_t, s_wbase, s_t2, s_scale, s_obase, s_nb, s_T = 48, 49, 50, 51, 52, 54, 55, 56, 57, 58
    STL = 65536
    magic = (1 << 32) // (8 * NCB) + 1
    e("s_and_b32 s%d, s2, 7" % s_t)
    e("s_mul_i32 s%d, s%d, %d" % (s_t, s_t, 4 * NCB))
    e("s_lshr_b32 s%d, s2, 3" % s_t2)
    e("s_add_u32 s%d, s%d, s%d" % (s_t2, s_t2, s_t))
    e("s_mov_b32 s%d, %s" % (s_t, hx(magic)))
    e("s_mul_hi_u32 s%d, s%d, s%d" % (s_rb, s_t2, s_t))
    e("s_mul_i32 s%d, s%d, %d" % (s_t, s_rb, 8 * NCB))
    e("s_sub_u32 s%d, s%d, s%d" % (s_t2, s_t2, s_t))
    e("s_lshr_b32 s%d, s%d, 3" % (s_cb, s_t2))
    e("s_and_b32 s%d, s%d, 7" % (s_t2, s_t2))
    e("s_lshl_b32 s%d, s%d, 3" % (s_rb, s_rb))
    e("s_add_u32 s%d, s%d, s%d" % (s_rb, s_rb, s_t2))
    e("v_lshrrev_b32 v2, 6, v0")
    e("v_and_b32 v1, 63, v0")
    e("v_lshrrev_b32 v5, 5, v1")
    e("v_readfirstlane_b32 s%d, v2" % s_w)
    e("v_lshlrev_b32 v3, 4, v1")
    e("s_waitcnt lgkmcnt(0)")
    if extra:
        lmain = k.newlabel("main")
        e("s_cmp_lt_u32 s2, %d" % NWG)
        e("s_cbranch_scc1 %s" % lmain)
        e("s_cmp_ge_u32 s%d, 4" % s_w)
        e("s_cbranch_scc1 L_%s_end" % name)
        emit_wsegs(k, extra, NWG, s_w)
        k.label(lmain)
    k.srd(SX, P_WS, xoff, S * D * 2)
    k.srd(SW, P_WS, wsoff, D * N * 2)
    k.srd(SS, P_WS, stoff, S * 256)
    k.srd(SC, P_WS, csoff, N * 4)
    e("s_lshl_b32 s%d, s%d, 16" % (s_t, s_rb))
    e("s_lshl_b32 s%d, s%d, 13" % (s_t2, s_w))
    e("s_add_u32 s%d, s%d, s%d" % (s_t, s_t, s_t2))
    for q in range(2):
        e("s_add_u32 m0, s%d, %d" % (s_t2, q * 4096))
        e("s_add_u32 s%d, s%d, %d" % (s_t + 8, s_t, q * 4096))
        for i in range(4):
            k.vmem("buffer_load_dwordx4 v3, %s, s%d offen offset:%d lds" % (sr(SX, 4), s_t + 8, i * 1024), "x")
    e("s_lshl_b32 s%d, s%d, 3" % (s_T, s_cb))
    e("s_add_u32 s%d, s%d, s%d" % (s_T, s_T, s_w))
    e("s_lshl_b32 s%d, s%d, 15" % (s_wbase, s_T))
    e("s_lshl_b32 s%d, s%d, 5" % (s_nb, s_T))

    def wload(ks):
        sg = s_t + 10
        if ks % 4 == 0:
            e("s_add_u32 s%d, s%d, %d" % (sg, s_wbase, ks * 1024))
        k.vmem("buffer_load_dwordx4 %s, v3, %s, s%d offen offset:%d" % (ar(ks * 4, 4), sr(SW, 4), sg, (ks % 4) * 1024), ("w", ks))

    LA = EXP.get("la8", 8)
    for ks in range(LA):
        wload(ks)
    ST = 64
    e("v_lshrrev_b32 v24, 3, v1")
    e("v_and_b32 v25, 7, v1")
    e("v_lshlrev_b32 v25, 16, v25")
    e("v_lshl_add_u32 v24, v24, 4, v25")
    e("s_lshl_b32 s%d, s%d, 10" % (s_t + 9, s_rb))
    e("s_lshl_b32 s%d, s%d, 7" % (s_t + 8, s_w))
    e("s_add_u32 s%d, s%d, s%d" % (s_t + 9, s_t + 9, s_t + 8))
    k.vmem("buffer_load_dwordx4 %s, v24, %s, s%d offen" % (vr(ST, 4), sr(SS, 4), s_t + 9), "st")
    e("s_add_u32 s%d, s%d, 32768" % (s_t + 9, s_t + 9))
    k.vmem("buffer_load_dwordx4 %s, v24, %s, s%d offen" % (vr(ST + 4, 4), sr(SS, 4), s_t + 9), "st")
    ACC = 32
    FRG = 96
    CSR = 8
    for r in range(32):
        e("v_mov_b32 v%d, 0" % (ACC + r))

    def stload(i):
        if i == 0:
            e("s_lshl_b32 s%d, s%d, 10" % (s_t + 9, s_rb))
        k.vmem("buffer_load_dwordx4 %s, v3, %s, s%d offen" % (vr(ST + 4 * (i % 6), 4), sr(SS, 4), s_t + 9), ("st", i))
        e("s_add_u32 s%d, s%d, 32768" % (s_t + 9, s_t + 9))

    def xreads(ks):
        b = FRG + 8 * (ks & 3)
        for rt in range(2):
            e("ds_read_b128 %s, v3 offset:%d" % (vr(b + 4 * rt, 4), rt * 32768 + ks * 1024))

    def main(tr):
        if EXP.get("prio", 1):
            lp = k.newlabel("prio")
            e("s_cmp_ge_u32 s%d, 4" % s_w)
            e("s_cbranch_scc1 %s" % lp)
            e("s_setprio 2")
            k.label(lp)
        k.vwait("x")
        e("s_barrier")
        xreads(0)
        xreads(1)
        for ks in range(32):
            if ks + 2 < 32:
                xreads(ks + 2)
            if ks + LA < 32:
                wload(ks + LA)
            if ks == 6:
                stats_math()
            if ks == 8:
                e("s_barrier")
            k.vwait(("w", ks), " lgkmcnt(%d)" % (2 * min(2, 31 - ks)))
            b = FRG + 8 * (ks & 3)
            for rt in range(2):
                a = ACC + 16 * rt
                xf, wf = vr(b + 4 * rt, 4), ar(ks * 4, 4)
                if tr:
                    e("v_mfma_f32_32x32x16_bf16 %s, %s, %s, %s" % (vr(a, 16), wf, xf, vr(a, 16)))
                else:
                    e("v_mfma_f32_32x32x16_bf16 %s, %s, %s, %s" % (vr(a, 16), xf, wf, vr(a, 16)))

    def stats_math():
        k.vwait("st")
        e("v_pk_add_f32 v[64:65], v[64:65], v[66:67]")
        e("v_pk_add_f32 v[68:69], v[68:69], v[70:71]")
        e("v_pk_add_f32 v[24:25], v[64:65], v[68:69]")
        for ctl in ("quad_perm:[1,0,3,2]", "quad_perm:[2,3,0,1]", "row_half_mirror"):
            e("s_nop 1")
            e("v_add_f32_dpp v24, v24, v24 %s row_mask:0xf bank_mask:0xf" % ctl)
            e("v_add_f32_dpp v25, v25, v25 %s row_mask:0xf bank_mask:0xf" % ctl)
        e("v_mul_f32 v29, %s, v24" % hx(f32bits(1.0 / D)))
        e("v_mul_f32 v28, %s, v25" % hx(f32bits(1.0 / D)))
        e("v_fma_f32 v28, -v29, v29, v28")
        e("v_max_f32 v28, 0, v28")
        e("v_cvt_pk_bf16_f32 v30, v29, v28")
        e("v_lshlrev_b32 v29, 16, v30")
        e("v_and_b32 v28, 0xffff0000, v30")
        e("v_add_f32 v28, %s, v28" % hx(f32bits(1e-5)))
        e("v_cvt_pk_bf16_f32 v30, v28, v28")
        e("v_and_b32 v28, 0xffff0000, v30")
        e("v_sqrt_f32 v28, v28")
        e("s_nop 0")
        e("v_cvt_pk_bf16_f32 v30, v28, v28")
        e("v_and_b32 v28, 0xffff0000, v30")
        e("v_rcp_f32 v28, v28")
        e("s_nop 0")
        e("v_mul_f32 v29, v29, v28")
        e("v_sub_f32 v29, 0, v29")
        e("v_lshrrev_b32 v30, 3, v1")
        e("v_lshlrev_b32 v30, 3, v30")
        e("s_lshl_b32 s%d, s%d, 6" % (s_t + 8, s_w))
        e("s_add_u32 s%d, s%d, %d" % (s_t + 8, s_t + 8, STL))
        e("v_add_u32 v30, s%d, v30" % (s_t + 8))
        e("ds_write_b64 v30, v[28:29]")
        e("s_waitcnt lgkmcnt(0)")

    def t_ab(scale):
        e("v_lshlrev_b32 v30, 3, v4")
        e("v_add_u32 v30, %d, v30" % STL)
        e("ds_read_b64 v[28:29], v30")
        e("ds_read_b64 v[30:31], v30 offset:256")
        e("s_waitcnt lgkmcnt(0)")
        if scale:
            for r in range(28, 32):
                e("v_mul_f32 v%d, s%d, v%d" % (r, s_scale, r))
        for rt, (aa, bb) in enumerate(((28, 29), (30, 31))):
            e("v_mov_b32 v%d, v%d" % (64 + 4 * rt, aa))
            e("v_mov_b32 v%d, v%d" % (65 + 4 * rt, aa))
            e("v_mov_b32 v%d, v%d" % (66 + 4 * rt, bb))
            e("v_mov_b32 v%d, v%d" % (67 + 4 * rt, bb))

    def ln_T(r0, rt, csr):
        for p in range(2):
            e("v_pk_mul_f32 %s, %s, %s" % (vr(r0 + 2 * p, 2), vr(r0 + 2 * p, 2), vr(64 + 4 * rt, 2)))
        for p in range(2):
            e("v_pk_fma_f32 %s, %s, %s, %s" % (vr(r0 + 2 * p, 2), vr(csr + 2 * p, 2), vr(66 + 4 * rt, 2), vr(r0 + 2 * p, 2)))

    def load_cs_T():
        e("v_lshlrev_b32 v6, 4, v5")
        e("s_lshl_b32 s%d, s%d, 2" % (s_t, s_nb))
        for g in range(4):
            k.vmem("buffer_load_dwordx4 %s, v6, %s, s%d offen offset:%d" % (vr(CSR + 4 * g, 4), sr(SC, 4), s_t, 32 * g), "cs")

    e("v_and_b32 v4, 31, v1")
    e("v_lshlrev_b32 v7, 4, v4")
    e("v_lshl_add_u32 v7, v5, 3, v7")
    if kind == 'qkv':
        lv = k.newlabel("vpath")
        e("s_cmp_ge_u32 s%d, 32" % s_T)
        e("s_cbranch_scc1 %s" % lv)
        vm_save = list(k.vm)
        load_cs_T()
        e("s_cmp_lt_u32 s%d, 16" % s_T)
        e("s_cselect_b32 s%d, %s, 1.0" % (s_scale, hx(f32bits(QSCALE))))
        k.srd(SO, P_WS, 0, 6 * MB)
        e("s_lshl_b32 s%d, s%d, 17" % (s_obase, s_T))
        e("s_lshl_b32 s%d, s%d, 11" % (s_t, s_rb))
        e("s_add_u32 s%d, s%d, s%d" % (s_obase, s_obase, s_t))
        main(True)
        t_ab(True)
        k.vwait("cs")
        e("s_nop 7")
        for rt in range(2):
            for g in range(4):
                r0 = ACC + 16 * rt + 4 * g
                ln_T(r0, rt, CSR + 4 * g)
                t0 = 72 + 2 * ((rt * 4 + g) & 3)
                e("v_cvt_pk_bf16_f32 v%d, %s, %s" % (t0, vr(r0), vr(r0 + 1)))
                e("v_cvt_pk_bf16_f32 v%d, %s, %s" % (t0 + 1, vr(r0 + 2), vr(r0 + 3)))
                e("s_add_u32 s%d, s%d, %d" % (s_t, s_obase, (g >> 1) * 65536 + rt * 1024 + (g & 1) * 512))
                e("buffer_store_dwordx2 v[%d:%d], v7, %s, s%d offen" % (t0, t0 + 1, sr(SO, 4), s_t))
        e("s_endpgm")
        k.label(lv)
        k.vm = vm_save
        e("v_lshlrev_b32 v6, 2, v4")
        e("s_lshl_b32 s%d, s%d, 2" % (s_t, s_nb))
        k.vmem("buffer_load_dword v8, v6, %s, s%d offen" % (sr(SC, 4), s_t), "cs")
        k.srd(SO, P_WS, WS_V, 2 * MB)
        e("s_sub_u32 s%d, s%d, 32" % (s_t, s_T))
        e("s_lshl_b32 s%d, s%d, 17" % (s_obase, s_t))
        e("s_lshl_b32 s%d, s%d, 11" % (s_t, s_rb))
        e("s_add_u32 s%d, s%d, s%d" % (s_obase, s_obase, s_t))
        e("v_bfe_u32 v7, v1, 4, 1")
        e("v_lshlrev_b32 v7, 16, v7")
        e("v_lshl_add_u32 v7, v5, 8, v7")
        e("v_and_b32 v6, 15, v1")
        e("v_lshl_add_u32 v7, v6, 4, v7")
        main(False)
        e("v_lshlrev_b32 v30, 5, v5")
        e("v_add_u32 v30, %d, v30" % STL)
        AB = 64
        for rt in range(2):
            for g in range(4):
                for h2 in range(2):
                    e("ds_read_b128 %s, v30 offset:%d" % (vr(AB + 32 * rt + 8 * g + 4 * h2, 4), (rt * 32 + 8 * g) * 8 + 16 * h2))
        e("s_waitcnt lgkmcnt(0)")
        k.vwait("cs")
        for rt in range(2):
            a = ACC + 16 * rt
            for r in range(16):
                ab = AB + 32 * rt + 2 * r
                e("v_mul_f32 %s, %s, %s" % (vr(a + r), vr(a + r), vr(ab)))
                e("v_fma_f32 %s, %s, v8, %s" % (vr(a + r), vr(ab + 1), vr(a + r)))
            for half in range(2):
                t0 = 12 + 4 * half
                for j in range(4):
                    r0 = a + 8 * half + 2 * j
                    e("v_cvt_pk_bf16_f32 v%d, %s, %s" % (t0 + j, vr(r0), vr(r0 + 1)))
                e("s_add_u32 s%d, s%d, %d" % (s_t, s_obase, (rt * 2 + half) * 512))
                e("buffer_store_dwordx4 v[%d:%d], v7, %s, s%d offen" % (t0, t0 + 3, sr(SO, 4), s_t))
                e("s_nop 1")
    else:
        load_cs_T()
        k.srd(SB, P_B1, 0, F * 2)
        k.srd(SO, P_WS, WS_H, S * F * 2)
        e("s_lshl_b32 s%d, s%d, 1" % (s_scale, s_nb))
        e("v_lshlrev_b32 v6, 3, v5")
        BI = BIR = 88
        for g in range(4):
            k.vmem("buffer_load_dwordx2 %s, v6, %s, s%d offen offset:%d" % (vr(BI + 2 * g, 2), sr(SB, 4), s_scale, 16 * g), "cs")
        e("s_mul_i32 s%d, s%d, %d" % (s_obase, s_rb, 2 * 112 * 1024))
        e("s_lshl_b32 s%d, s%d, 6" % (s_t, s_nb))
        e("s_add_u32 s%d, s%d, s%d" % (s_obase, s_obase, s_t))
        main(True)
        t_ab(False)
        k.vwait("cs")
        BF = 96
        c1 = -2.0 * 0.7978845608028654 * 1.4426950408889634
        e("v_mov_b32 v120, %s" % hx(f32bits(c1 * 0.044715)))
        e("v_mov_b32 v121, %s" % hx(f32bits(c1 * 0.044715)))
        e("v_mov_b32 v122, %s" % hx(f32bits(c1)))
        e("v_mov_b32 v123, %s" % hx(f32bits(c1)))
        e("v_mov_b32 v124, 1.0")
        e("v_mov_b32 v125, 1.0")
        for q in range(4):
            for h2 in range(2):
                e("v_lshlrev_b32 %s, 16, %s" % (vr(BF + 4 * q + 2 * h2), vr(BIR + 2 * q + h2)))
                e("v_and_b32 %s, 0xffff0000, %s" % (vr(BF + 4 * q + 2 * h2 + 1), vr(BIR + 2 * q + h2)))
        for rt in range(2):
            for g in range(4):
                r0 = ACC + 16 * rt + 4 * g
                bq = BF + 4 * g
                ln_T(r0, rt, CSR + 4 * g)
                for p in range(2):
                    e("v_pk_add_f32 %s, %s, %s" % (vr(r0 + 2 * p, 2), vr(r0 + 2 * p, 2), vr(bq + 2 * p, 2)))
                out = []
                for p in range(2):
                    round_pair(out, r0 + 2 * p, r0 + 2 * p + 1, 72 + p)
                for ins in out:
                    e(ins)
                T = 76
                for p in range(2):
                    e("v_pk_mul_f32 %s, %s, %s" % (vr(T + 2 * p, 2), vr(r0 + 2 * p, 2), vr(r0 + 2 * p, 2)))
                for p in range(2):
                    e("v_pk_fma_f32 %s, %s, v[120:121], v[122:123]" % (vr(T + 2 * p, 2), vr(T + 2 * p, 2)))
                for p in range(2):
                    e("v_pk_mul_f32 %s, %s, %s" % (vr(T + 2 * p, 2), vr(T + 2 * p, 2), vr(r0 + 2 * p, 2)))
                for j in range(4):
                    e("v_exp_f32 v%d, v%d" % (T + j, T + j))
                e("s_nop 0")
                for p in range(2):
                    e("v_pk_add_f32 %s, %s, v[124:125]" % (vr(T + 2 * p, 2), vr(T + 2 * p, 2)))
                for j in range(4):
                    e("v_rcp_f32 v%d, v%d" % (T + j, T + j))
                e("s_nop 0")
                for p in range(2):
                    e("v_pk_mul_f32 %s, %s, %s" % (vr(r0 + 2 * p, 2), vr(r0 + 2 * p, 2), vr(T + 2 * p, 2)))
                t0 = 80 + 2 * (g & 1)
                e("v_cvt_pk_bf16_f32 v%d, %s, %s" % (t0, vr(r0), vr(r0 + 1)))
                e("v_cvt_pk_bf16_f32 v%d, %s, %s" % (t0 + 1, vr(r0 + 2), vr(r0 + 3)))
                e("s_add_u32 s%d, s%d, %d" % (s_t, s_obase, rt * 112 * 1024 + (g >> 1) * 1024 + (g & 1) * 512))
                e("buffer_store_dwordx2 v[%d:%d], v7, %s, s%d offen" % (t0, t0 + 1, sr(SO, 4), s_t))
    k.end()
    return k, NTOT, 512, 65536 + 4096


def nolds(k, t):
    if not EXP.get('nolds'):
        k.e(t)


def attention(name):
    k = K(name, 128)
    k.prologue(256)
    SQ, SK, SV, SO = 28, 32, 36, 40
    s_h, s_qc, s_w, s_t, s_cnt = 48, 49, 50, 51, 52
    ONES = 131072
    k.e("s_and_b32 s%d, s2, 31" % s_h)
    k.e("s_lshr_b32 s%d, s2, 5" % s_qc)
    k.e("v_lshrrev_b32 v2, 6, v0")
    k.e("v_and_b32 v1, 63, v0")
    k.e("s_nop 0")
    k.e("v_readfirstlane_b32 s%d, v2" % s_w)
    k.e("s_waitcnt lgkmcnt(0)")
    k.srd(SQ, P_WS, WS_Q, 2 * MB)
    k.srd(SK, P_WS, WS_K, 2 * MB)
    k.srd(SV, P_WS, WS_V, 2 * MB)
    k.srd(SO, P_WS, WS_O, 2 * MB)
    k.e("v_lshlrev_b32 v3, 4, v1")
    k.e("s_lshl_b32 s%d, s%d, 16" % (s_t, s_h))
    k.e("s_lshl_b32 s%d, s%d, 13" % (s_cnt, s_qc))
    k.e("s_add_u32 s%d, s%d, s%d" % (s_t, s_t, s_cnt))
    k.e("s_lshl_b32 s%d, s%d, 10" % (s_cnt, s_w))
    k.e("s_add_u32 s%d, s%d, s%d" % (s_t, s_t, s_cnt))
    QF = 28
    k.e("buffer_load_dwordx4 %s, v3, %s, s%d offen" % (vr(QF, 4), sr(SQ, 4), s_t))
    k.e("s_lshl_b32 s%d, s%d, 16" % (s_t, s_h))
    k.e("s_lshl_b32 s%d, s%d, 13" % (s_cnt, s_w))
    k.e("s_add_u32 s%d, s%d, s%d" % (s_t, s_t, s_cnt))
    for which, srd_, base in ((0, SK, 0), (1, SV, 65536)):
        for q in range(2):
            k.e("s_add_u32 m0, s%d, %d" % (s_cnt, base + q * 4096))
            k.e("s_add_u32 s%d, s%d, %d" % (s_cnt + 1, s_t, q * 4096))
            for i in range(4):
                k.e("buffer_load_dwordx4 v3, %s, s%d offen offset:%d lds" % (sr(srd_, 4), s_cnt + 1, i * 1024))
    k.e("v_mov_b32 v8, 0x3f803f80")
    k.e("v_mov_b32 v9, 0x3f803f80")
    k.e("v_lshlrev_b32 v12, 3, v0")
    k.e("v_add_u32 v12, %d, v12" % ONES)
    k.e("ds_write_b64 v12, v[8:9]")
    k.e("v_lshrrev_b32 v5, 5, v1")
    k.e("v_and_b32 v13, 15, v1")
    k.e("v_lshlrev_b32 v13, 4, v13")
    k.e("v_lshl_add_u32 v13, v5, 8, v13")
    k.e("v_add_u32 v14, 65536, v13")
    k.e("v_add_u32 v15, %d, v13" % ONES)
    k.e("v_and_b32 v16, 16, v1")
    k.e("v_cmp_eq_u32 vcc, 0, v16")
    k.e("v_mov_b32 v16, 0")
    k.e("v_mov_b32 v19, 4096")
    k.e("s_nop 1")
    k.e("v_cndmask_b32 v17, v16, v19, vcc")
    k.e("v_cndmask_b32 v18, v15, v14, vcc")
    k.e("v_mov_b32 v19, %s" % hx(f32bits(2.0 ** -90)))

    MX = 24
    S4 = [32, 48, 64, 80]
    KF = [96, 100, 104, 108]
    NEG = 32
    SA, SB_ = 48, 64
    OA = 80
    PK = 96
    KF0, KF1 = 104, 108
    VF = 112
    s_fb = 54
    KMX = ONES + 4096
    k.e("s_waitcnt vmcnt(8) lgkmcnt(0)")
    k.e("s_barrier")
    k.e("s_lshl_b32 s%d, s%d, 13" % (s_t, s_w))
    k.e("v_add_u32 v22, s%d, v3" % s_t)
    for j in range(8):
        k.e("ds_read_b128 %s, v22 offset:%d" % (vr(32 + 4 * j, 4), j * 1024))
    k.e("v_mov_b32 v24, 0")
    for j in range(8):
        k.e("s_waitcnt lgkmcnt(%d)" % (7 - j))
        k.e("v_mov_b32 v%d, 0" % (64 + j))
        for i in range(4):
            k.e("v_dot2_f32_bf16 v%d, v%d, v%d, v%d" % (64 + j, 32 + 4 * j + i, 32 + 4 * j + i, 64 + j))
    k.e("v_mov_b32 v25, 0")
    for i in range(4):
        k.e("v_dot2_f32_bf16 v25, v%d, v%d, v25" % (QF + i, QF + i))
    k.e("s_nop 2")
    k.e("v_max3_f32 v24, v64, v65, v66")
    k.e("v_max3_f32 v26, v67, v68, v69")
    k.e("v_max3_f32 v24, v24, v70, v71")
    k.e("v_max_f32 v24, v24, v26")
    for ctl in ("quad_perm:[1,0,3,2]", "quad_perm:[2,3,0,1]", "row_half_mirror", "row_mirror"):
        k.e("s_nop 1")
        k.e("v_max_f32_dpp v24, v24, v24 %s row_mask:0xf bank_mask:0xf" % ctl)
    k.e("v_lshrrev_b32 v26, 4, v1")
    k.e("v_lshlrev_b32 v26, 2, v26")
    k.e("s_lshl_b32 s%d, s%d, 4" % (s_t, s_w))
    k.e("s_add_u32 s%d, s%d, %d" % (s_t, s_t, KMX))
    k.e("v_add_u32 v26, s%d, v26" % s_t)
    k.e("ds_write_b32 v26, v24")
    k.e("v_mov_b32 v26, v25")
    k.e("s_nop 1")
    k.e("v_permlane32_swap_b32 v25, v26")
    k.e("s_nop 1")
    k.e("v_add_f32 v25, v25, v26")
    k.e("s_waitcnt vmcnt(0) lgkmcnt(0)")
    k.e("s_barrier")
    k.e("v_mov_b32 v26, %d" % KMX)
    for j in range(8):
        k.e("ds_read_b128 %s, v26 offset:%d" % (vr(32 + 4 * j, 4), 16 * j))
    k.e("s_waitcnt lgkmcnt(0)")
    for c in range(4):
        k.e("v_max3_f32 v%d, v%d, v%d, v%d" % (64 + c, 32 + c, 36 + c, 40 + c))
        k.e("v_max3_f32 v%d, v%d, v%d, v%d" % (64 + c, 64 + c, 44 + c, 48 + c))
        k.e("v_max3_f32 v%d, v%d, v%d, v%d" % (64 + c, 64 + c, 52 + c, 56 + c))
        k.e("v_max_f32 v%d, v%d, v%d" % (64 + c, 64 + c, 60 + c))
    k.e("v_max_f32 v64, v64, v65")
    k.e("v_max_f32 v66, v66, v67")
    k.e("v_add_f32 v64, v64, v66")
    k.e("v_mul_f32 v24, v25, v64")
    k.e("v_sqrt_f32 v24, v24")
    k.e("s_nop 0")
    k.e("v_fma_f32 v24, v24, %s, %s" % ("1.0", "0.5"))
    k.e("v_mul_f32 v24, %s, v24" % hx(f32bits(-1.001)))
    k.e("s_mov_b32 s%d, 0" % s_fb)
    lp2 = k.newlabel("pass2")
    k.label(lp2)
    for j in range(16):
        k.e("v_mov_b32 v%d, v24" % (NEG + j))
    for j in range(16):
        k.e("v_mov_b32 v%d, 0" % (OA + j))
    k.e("v_mov_b32 v22, v3")
    k.e("v_mov_b32 v23, v18")
    k.e("ds_read_b128 %s, v22" % vr(KF0, 4))
    k.e("ds_read_b128 %s, v22 offset:1024" % vr(KF1, 4))
    for j in range(4):
        k.e("ds_read_b128 %s, v23 offset:%d" % (vr(VF + 4 * j, 4), 512 * j))
    k.e("s_waitcnt lgkmcnt(5)")
    k.e("v_mfma_f32_32x32x16_bf16 %s, %s, %s, %s" % (vr(SA, 16), vr(KF0, 4), vr(QF, 4), vr(NEG, 16)))
    k.e("s_mov_b32 s%d, 0" % s_cnt)
    k.e("s_nop 7")
    k.e("s_nop 3")

    def softmax_pv(Sx, vf0, vf1):
        for j in range(16):
            k.e("v_exp_f32 %s, %s" % (vr(Sx + j), vr(Sx + j)))
            if j % 2 == 1 and j >= 3:
                k.e("v_cvt_pk_bf16_f32 %s, %s, %s" % (vr(PK + (j - 3) // 2), vr(Sx + j - 3), vr(Sx + j - 2)))
        k.e("v_mfma_f32_32x32x16_bf16 %s, %s, %s, %s" % (vr(OA, 16), vr(vf0, 4), vr(PK, 4), vr(OA, 16)))
        k.e("v_cvt_pk_bf16_f32 %s, %s, %s" % (vr(PK + 7), vr(Sx + 14), vr(Sx + 15)))
        k.e("s_nop 1")
        k.e("v_mfma_f32_32x32x16_bf16 %s, %s, %s, %s" % (vr(OA, 16), vr(vf1, 4), vr(PK + 4, 4), vr(OA, 16)))

    l2 = k.newlabel("p2")
    k.label(l2)
    for half in range(2):
        ko = half * 2048
        k.e("s_waitcnt lgkmcnt(0)")
        k.e("v_mfma_f32_32x32x16_bf16 %s, %s, %s, %s" % (vr(SB_, 16), vr(KF1, 4), vr(QF, 4), vr(NEG, 16)))
        k.e("ds_read_b128 %s, v22 offset:%d" % (vr(KF0, 4), ko + 2048))
        k.e("ds_read_b128 %s, v22 offset:%d" % (vr(KF1, 4), ko + 3072))
        softmax_pv(SA, VF, VF + 4)
        if half == 1:
            k.e("v_add_u32 v23, v23, v17")
            vn = 0
        else:
            vn = 2048
        k.e("ds_read_b128 %s, v23 offset:%d" % (vr(VF, 4), vn))
        k.e("ds_read_b128 %s, v23 offset:%d" % (vr(VF + 4, 4), vn + 512))
        k.e("s_waitcnt lgkmcnt(2)")
        k.e("v_mfma_f32_32x32x16_bf16 %s, %s, %s, %s" % (vr(SA, 16), vr(KF0, 4), vr(QF, 4), vr(NEG, 16)))
        if half == 1:
            k.e("v_add_u32 v22, 4096, v22")
            k.e("s_add_u32 s%d, s%d, 1" % (s_cnt, s_cnt))
            k.e("s_cmp_lt_u32 s%d, 16" % s_cnt)
        softmax_pv(SB_, VF + 8, VF + 12)
        k.e("ds_read_b128 %s, v23 offset:%d" % (vr(VF + 8, 4), vn + 1024))
        k.e("ds_read_b128 %s, v23 offset:%d" % (vr(VF + 12, 4), vn + 1536))
    k.e("s_cbranch_scc1 %s" % l2)
    k.e("s_waitcnt lgkmcnt(0)")
    k.e("s_nop 15")
    k.e("s_nop 3")
    ldone = k.newlabel("ok")
    k.e("v_cmp_nge_f32 vcc, %s, %s" % (vr(OA + 8), "v16" if False else "v19"))
    k.e("s_cmp_lg_u32 s%d, 0" % s_fb)
    k.e("s_cbranch_scc1 %s" % ldone)
    k.e("s_cbranch_vccz %s" % ldone) if not EXP.get("force_fb") else None
    k.e("s_mov_b32 s%d, 1" % s_fb)
    k.e("v_mov_b32 v22, v3")
    for j in range(4):
        k.e("v_mov_b32 v%d, 0xff800000" % (MX + j))
    for j in range(4):
        k.e("ds_read_b128 %s, v22 offset:%d" % (vr(KF[j], 4), j * 1024))
    k.e("s_waitcnt lgkmcnt(2)")
    k.e("v_mfma_f32_32x32x16_bf16 %s, %s, %s, 0" % (vr(S4[0], 16), vr(KF[0], 4), vr(QF, 4)))
    k.e("v_mfma_f32_32x32x16_bf16 %s, %s, %s, 0" % (vr(S4[1], 16), vr(KF[1], 4), vr(QF, 4)))
    k.e("ds_read_b128 %s, v22 offset:4096" % vr(KF[0], 4))
    k.e("ds_read_b128 %s, v22 offset:5120" % vr(KF[1], 4))
    k.e("s_mov_b32 s%d, 0" % s_cnt)

    def maxes(Sx):
        for j in range(8):
            k.e("v_max3_f32 v%d, v%d, %s, %s" % (MX + (j & 3), MX + (j & 3), vr(Sx + 2 * j), vr(Sx + 2 * j + 1)))

    l1 = k.newlabel("p1")
    k.label(l1)
    k.e("s_waitcnt lgkmcnt(2)")
    k.e("v_mfma_f32_32x32x16_bf16 %s, %s, %s, 0" % (vr(S4[2], 16), vr(KF[2], 4), vr(QF, 4)))
    k.e("v_mfma_f32_32x32x16_bf16 %s, %s, %s, 0" % (vr(S4[3], 16), vr(KF[3], 4), vr(QF, 4)))
    k.e("ds_read_b128 %s, v22 offset:6144" % vr(KF[2], 4))
    k.e("ds_read_b128 %s, v22 offset:7168" % vr(KF[3], 4))
    k.e("s_add_u32 s%d, s%d, 1" % (s_cnt, s_cnt))
    k.e("s_cmp_lt_u32 s%d, 16" % s_cnt)
    k.e("v_add_u32 v22, 4096, v22")
    k.e("s_nop 4")
    maxes(S4[0])
    maxes(S4[1])
    k.e("s_waitcnt lgkmcnt(2)")
    k.e("v_mfma_f32_32x32x16_bf16 %s, %s, %s, 0" % (vr(S4[0], 16), vr(KF[0], 4), vr(QF, 4)))
    k.e("v_mfma_f32_32x32x16_bf16 %s, %s, %s, 0" % (vr(S4[1], 16), vr(KF[1], 4), vr(QF, 4)))
    k.e("ds_read_b128 %s, v22 offset:4096" % vr(KF[0], 4))
    k.e("ds_read_b128 %s, v22 offset:5120" % vr(KF[1], 4))
    maxes(S4[2])
    maxes(S4[3])
    k.e("s_cbranch_scc1 %s" % l1)
    k.e("v_max3_f32 v24, v24, v25, v26")
    k.e("v_max_f32 v24, v24, v27")
    k.e("v_mov_b32 v25, v24")
    k.e("s_nop 1")
    k.e("v_permlane32_swap_b32 v24, v25")
    k.e("s_nop 1")
    k.e("v_max_f32 v24, v24, v25")
    k.e("v_sub_f32 v24, 0, v24")
    k.e("s_waitcnt lgkmcnt(0)")
    k.e("s_nop 7")
    k.e("s_branch %s" % lp2)
    k.label(ldone)
    k.e("v_rcp_f32 v24, %s" % vr(OA + 8))
    k.e("s_nop 0")
    for j in range(8):
        k.e("v_mul_f32 %s, %s, v24" % (vr(OA + j), vr(OA + j)))
    for j in range(4):
        k.e("v_cvt_pk_bf16_f32 %s, %s, %s" % (vr(PK + j), vr(OA + 2 * j), vr(OA + 2 * j + 1)))
    k.e("v_and_b32 v24, 31, v1")
    k.e("v_lshlrev_b32 v24, 4, v24")
    k.e("v_lshl_add_u32 v24, v5, 3, v24")
    k.e("s_lshl_b32 s%d, s%d, 18" % (s_t, s_qc))
    k.e("s_lshl_b32 s%d, s%d, 15" % (s_cnt, s_w))
    k.e("s_add_u32 s%d, s%d, s%d" % (s_t, s_t, s_cnt))
    k.e("s_lshl_b32 s%d, s%d, 10" % (s_cnt, s_h))
    k.e("s_add_u32 s%d, s%d, s%d" % (s_t, s_t, s_cnt))
    k.e("buffer_store_dwordx2 %s, v24, %s, s%d offen" % (vr(PK, 2), sr(SO, 4), s_t))
    k.e("buffer_store_dwordx2 %s, v24, %s, s%d offen offset:512" % (vr(PK + 2, 2), sr(SO, 4), s_t))
    k.e("s_waitcnt lgkmcnt(0)")
    k.end()
    return k, 256, 512, 131072 + 8192 + 256


def gemm64(name, aoff, Kdim, woff, bias, roff, dst, stoff):
    KS = Kdim // 16
    KSW = KS // 4
    WIN = min(KSW, 14)
    final = dst[0] == 'arg'
    k = K(name, 128, WIN * 16)
    k.prologue(256)
    SA_, SW, SR, SO, SB, SS = 28, 32, 36, 40, 44, 56
    s_rb, s_cb, s_w, s_t, s_t2, s_abase, s_wbase, s_xo = 48, 49, 50, 51, 52, 53, 54, 55
    k.e("s_and_b32 s%d, s2, 7" % s_t)
    k.e("s_lshl_b32 s%d, s%d, 2" % (s_rb, s_t))
    k.e("s_lshr_b32 s%d, s2, 6" % s_t)
    k.e("s_add_u32 s%d, s%d, s%d" % (s_rb, s_rb, s_t))
    k.e("s_lshr_b32 s%d, s2, 3" % s_cb)
    k.e("s_and_b32 s%d, s%d, 7" % (s_cb, s_cb))
    k.e("v_lshrrev_b32 v2, 6, v0")
    k.e("v_and_b32 v1, 63, v0")
    k.e("v_lshlrev_b32 v3, 4, v1")
    k.e("v_readfirstlane_b32 s%d, v2" % s_w)
    k.e("s_waitcnt lgkmcnt(0)")
    k.srd(SA_, P_WS, aoff, S * Kdim * 2)
    k.srd(SW, P_WS, woff, Kdim * D * 2)
    k.srd(SR, P_WS, roff, S * D * 2)
    src_srd(k, SO, dst, S * D * 2)
    if bias is not None:
        k.srd(SB, bias, 0, D * 2)
    if not final:
        k.srd(SS, P_WS, stoff, S * 256)
    k.e("s_mul_i32 s%d, s%d, %d" % (s_t, s_w, KSW * 1024))
    k.e("s_mul_i32 s%d, s%d, %d" % (s_abase, s_rb, 2 * KS * 1024))
    k.e("s_add_u32 s%d, s%d, s%d" % (s_abase, s_abase, s_t))
    k.e("s_mul_i32 s%d, s%d, %d" % (s_wbase, s_cb, 2 * KS * 1024))
    k.e("s_add_u32 s%d, s%d, s%d" % (s_wbase, s_wbase, s_t))
    k.e("v_lshrrev_b32 v15, 5, v1")
    k.e("v_and_b32 v14, 31, v1")
    k.e("v_lshlrev_b32 v16, 4, v14")
    k.e("v_lshl_add_u32 v16, v15, 3, v16")
    k.e("s_lshr_b32 s%d, s%d, 1" % (s_t, s_w))
    k.e("s_lshl_b32 s%d, s%d, 1" % (s_t2, s_rb))
    k.e("s_add_u32 s%d, s%d, s%d" % (s_t, s_t, s_t2))
    k.e("s_lshl_b32 s%d, s%d, 15" % (s_xo, s_t))
    k.e("s_lshl_b32 s%d, s%d, 12" % (s_t2, s_cb))
    k.e("s_add_u32 s%d, s%d, s%d" % (s_xo, s_xo, s_t2))
    k.e("s_and_b32 s%d, s%d, 1" % (s_t2, s_w))
    k.e("s_lshl_b32 s%d, s%d, 11" % (s_t2, s_t2))
    k.e("s_add_u32 s%d, s%d, s%d" % (s_xo, s_xo, s_t2))

    def loads(s):
        slot = (s % WIN) * 16
        for t in range(2):
            k.e("s_add_u32 s%d, s%d, %d" % (s_t, s_abase, (t * KS + s) * 1024))
            k.vmem("buffer_load_dwordx4 %s, v3, %s, s%d offen" % (ar(slot + 4 * t, 4), sr(SA_, 4), s_t), ("m", s))
        for t in range(2):
            k.e("s_add_u32 s%d, s%d, %d" % (s_t, s_wbase, (t * KS + s) * 1024))
            k.vmem("buffer_load_dwordx4 %s, v3, %s, s%d offen" % (ar(slot + 8 + 4 * t, 4), sr(SW, 4), s_t), ("m", s))

    NW0 = min(WIN, EXP.get("nw0", 6))
    for s in range(NW0):
        loads(s)
    RX = 40
    for g in range(4):
        k.vmem("buffer_load_dwordx2 %s, v16, %s, s%d offen offset:%d" % (vr(RX + 2 * g, 2), sr(SR, 4), s_xo, 512 * g), "res")
    if bias is not None:
        k.e("s_lshl_b32 s%d, s%d, 7" % (s_t, s_cb))
        k.e("s_and_b32 s%d, s%d, 1" % (s_t2, s_w))
        k.e("s_lshl_b32 s%d, s%d, 6" % (s_t2, s_t2))
        k.e("s_add_u32 s%d, s%d, s%d" % (s_t, s_t, s_t2))
        k.e("v_lshlrev_b32 v17, 3, v15")
        for g in range(4):
            k.vmem("buffer_load_dwordx2 %s, v17, %s, s%d offen offset:%d" % (vr(48 + 2 * g, 2), sr(SB, 4), s_t, 16 * g), "res")
    ACC = 64
    for r in range(64):
        k.e("v_mov_b32 v%d, 0" % (ACC + r))
    issued = NW0
    for s in range(KSW):
        k.vwait(("m", s))
        slot = (s % WIN) * 16
        for rt in range(2):
            for ct in range(2):
                a = ACC + 16 * (2 * rt + ct)
                k.e("v_mfma_f32_32x32x16_bf16 %s, %s, %s, %s" % (vr(a, 16), ar(slot + 8 + 4 * ct, 4), ar(slot + 4 * rt, 4), vr(a, 16)))
        nn = 0
        while issued < KSW and issued - WIN <= s and issued <= s + EXP.get("nw0", 6) + 0 and nn < 2:
            loads(issued)
            issued += 1
            nn += 1
    k.e("s_lshl_b32 s%d, s%d, 12" % (s_t2, s_w))
    k.e("v_add_u32 v4, s%d, v3" % s_t2)
    k.e("s_lshl_b32 s%d, s%d, 14" % (s_t2, s_w))
    k.e("v_add_u32 v6, s%d, v3" % s_t2)
    k.e("s_nop 15")
    for t in range(4):
        for q in range(4):
            k.e("ds_write_b128 v4, %s offset:%d" % (vr(ACC + 16 * t + 4 * q, 4), t * 16384 + q * 1024))
    k.e("s_waitcnt lgkmcnt(0)")
    k.e("s_barrier")
    for w2 in range(4):
        for q in range(4):
            k.e("ds_read_b128 %s, v6 offset:%d" % (vr(ACC + 16 * w2 + 4 * q, 4), w2 * 4096 + q * 1024))
    if final:
        k.e("s_lshr_b32 s%d, s%d, 1" % (s_t, s_w))
        k.e("s_lshl_b32 s%d, s%d, 5" % (s_t, s_t))
        k.e("s_lshl_b32 s%d, s%d, 6" % (s_t2, s_rb))
        k.e("s_add_u32 s%d, s%d, s%d" % (s_t, s_t, s_t2))
        k.e("v_add_u32 v18, s%d, v14" % s_t)
        k.e("v_lshlrev_b32 v18, 10, v18")
        k.e("v_lshl_add_u32 v18, v15, 3, v18")
        k.e("s_lshl_b32 s%d, s%d, 7" % (s_xo, s_cb))
        k.e("s_and_b32 s%d, s%d, 1" % (s_t2, s_w))
        k.e("s_lshl_b32 s%d, s%d, 6" % (s_t2, s_t2))
        k.e("s_add_u32 s%d, s%d, s%d" % (s_xo, s_xo, s_t2))
    else:
        k.e("v_mov_b32 v18, v16")
        k.e("v_mov_b32 v7, 0x3f803f80")
        k.e("v_mov_b32 v8, 0")
        k.e("v_mov_b32 v9, 0")
    k.e("s_waitcnt vmcnt(0) lgkmcnt(0)")
    for r in range(0, 16, 2):
        k.e("v_pk_add_f32 %s, %s, %s" % (vr(ACC + r, 2), vr(ACC + r, 2), vr(ACC + 16 + r, 2)))
        k.e("v_pk_add_f32 %s, %s, %s" % (vr(ACC + 32 + r, 2), vr(ACC + 32 + r, 2), vr(ACC + 48 + r, 2)))
    for r in range(0, 16, 2):
        k.e("v_pk_add_f32 %s, %s, %s" % (vr(ACC + r, 2), vr(ACC + r, 2), vr(ACC + 32 + r, 2)))
    for g in range(4):
        r0 = ACC + 4 * g
        out = []
        for p in range(2):
            round_pair(out, r0 + 2 * p, r0 + 2 * p + 1, 56 + p)
        if bias is not None:
            for p in range(2):
                out.append("v_lshlrev_b32 v58, 16, %s" % vr(48 + 2 * g + p))
                out.append("v_and_b32 v59, 0xffff0000, %s" % vr(48 + 2 * g + p))
                out.append("v_pk_add_f32 %s, %s, v[58:59]" % (vr(r0 + 2 * p, 2), vr(r0 + 2 * p, 2)))
            for p in range(2):
                round_pair(out, r0 + 2 * p, r0 + 2 * p + 1, 56 + p)
        for p in range(2):
            out.append("v_lshlrev_b32 v58, 16, %s" % vr(RX + 2 * g + p))
            out.append("v_and_b32 v59, 0xffff0000, %s" % vr(RX + 2 * g + p))
            out.append("v_pk_add_f32 %s, %s, v[58:59]" % (vr(r0 + 2 * p, 2), vr(r0 + 2 * p, 2)))
        for ins in out:
            k.e(ins)
        o = 20 + 2 * g
        k.e("v_cvt_pk_bf16_f32 v%d, %s, %s" % (o, vr(r0), vr(r0 + 1)))
        k.e("v_cvt_pk_bf16_f32 v%d, %s, %s" % (o + 1, vr(r0 + 2), vr(r0 + 3)))
        k.e("buffer_store_dwordx2 v[%d:%d], v18, %s, s%d offen offset:%d" % (o, o + 1, sr(SO, 4), s_xo, (16 if final else 512) * g))
        if not final:
            for p in range(2):
                k.e("v_dot2_f32_bf16 v8, v%d, v7, v8" % (o + p))
                k.e("v_dot2_f32_bf16 v9, v%d, v%d, v9" % (o + p, o + p))
    if not final:
        k.e("v_mov_b32 v10, v16")
        k.e("s_lshr_b32 s%d, s%d, 1" % (s_t, s_w))
        k.e("s_lshl_b32 s%d, s%d, 1" % (s_t2, s_rb))
        k.e("s_add_u32 s%d, s%d, s%d" % (s_t, s_t, s_t2))
        k.e("s_lshl_b32 s%d, s%d, 9" % (s_t, s_t))
        k.e("s_lshl_b32 s%d, s%d, 16" % (s_t2, s_cb))
        k.e("s_add_u32 s%d, s%d, s%d" % (s_t, s_t, s_t2))
        k.e("s_and_b32 s%d, s%d, 1" % (s_t2, s_w))
        k.e("s_lshl_b32 s%d, s%d, 15" % (s_t2, s_t2))
        k.e("s_add_u32 s%d, s%d, s%d" % (s_t, s_t, s_t2))
        k.e("buffer_store_dwordx2 v[8:9], v10, %s, s%d offen" % (sr(SS, 4), s_t))
    k.end()
    return k, 256, 256, 65536


def build():
    ks = []
    ks.append(prep("prep_kernel"))
    LG = lngemm if EXP.get("lg4") else lngemm8
    ks.append(LG("qkv1_kernel", WS_X0, WS_ST0, WS_WQ, WS_CSQ, 3 * D, 'qkv', SEG_ALL[1:]))
    ks.append(attention("attn_kernel"))
    ks.append(gemm64("wo1_kernel", WS_O, D, WS_WO, None, WS_X0, ('ws', WS_X1), WS_ST1))
    ks.append(LG("ffn1a_kernel", WS_X1, WS_ST1, WS_W1, WS_CS1, F, 'ffn1'))
    ks.append(gemm64("ffn2a_kernel", WS_H, F, WS_W2, P_B2, WS_X1, ('ws', WS_X2), WS_ST2))
    ks.append(LG("qkv2_kernel", WS_X2, WS_ST2, WS_WQ, WS_CSQ, 3 * D, 'qkv'))
    ks.append(gemm64("wo2_kernel", WS_O, D, WS_WO, None, WS_X2, ('ws', WS_X3), WS_ST3))
    ks.append(LG("ffn1b_kernel", WS_X3, WS_ST3, WS_W1, WS_CS1, F, 'ffn1'))
    ks.append(gemm64("ffn2b_kernel", WS_H, F, WS_W2, P_B2, WS_X3, ('arg', P_OUT), None))
    byname = {k.name: (k, nwg, blk, lds) for k, nwg, blk, lds in ks}
    order = ["prep_kernel", "qkv1_kernel", "attn_kernel", "wo1_kernel", "ffn1a_kernel", "ffn2a_kernel",
             "qkv2_kernel", "attn_kernel", "wo2_kernel", "ffn1b_kernel", "ffn2b_kernel"]
    out = []
    for n in order:
        k, nwg, blk, lds = byname[n]
        out.append("; @launch kernel=%s grid=(%d,1,1) block=(%d,1,1) lds=%d" % (n, nwg, blk, lds))
    out.append('.amdgcn_target "amdgcn-amd-amdhsa--gfx950"')
    out.append(".text")
    for k, _, _, _ in ks:
        out += k.lines
    out.append('.section .rodata,"a"')
    for k, _, _, _ in ks:
        out.append(".p2align 6")
        out.append(k.desc())
    return "\n".join(out) + "\n"


if __name__ == "__main__":
    path = sys.argv[1] if len(sys.argv) > 1 else "cdna_kernels/%s.s" % NAME
    open(path, "w").write(build())
    print("wrote", path)
```

```python
import struct, sys, os, json

NAME = "interleave_layers__softmax_full_mha__dense_activation_gelu__prompt"
S, D, H, DH, F = 2048, 512, 32, 16, 1792
EXP = json.loads(os.environ.get("EXP", "{}"))

MB = 1 << 20
WS_Q, WS_K, WS_V, WS_O, WS_X1, WS_H, WS_X2, WS_X3 = 0, 2 * MB, 4 * MB, 6 * MB, 8 * MB, 10 * MB, 18 * MB, 20 * MB
WS_WQ, WS_WO, WS_W1, WS_W2 = 22 * MB, 24 * MB, 25 * MB, 27 * MB
WS_X0 = 30 * MB
WS_ST0, WS_ST1, WS_ST2, WS_ST3 = 32 * MB, 33 * MB, 34 * MB, 35 * MB
WS_CSQ, WS_CS1 = 36 * MB, 36 * MB + 65536

P_AX, P_WQKV, P_WO, P_BX, P_W1, P_B1, P_W2, P_B2, P_OUT, P_DBG, P_WS = 4, 6, 8, 10, 12, 14, 16, 18, 20, 22, 24
QSCALE = 0.25 * 1.4426950408889634


def f32bits(x):
    return struct.unpack("<I", struct.pack("<f", x))[0]


def hx(x):
    return "0x%08x" % (x & 0xFFFFFFFF)


class K:
    def __init__(self, name, nvgpr, nagpr=0, nsgpr=96):
        self.name = name
        self.lines = []
        self.nvgpr = nvgpr
        self.nagpr = nagpr
        self.nsgpr = nsgpr
        self.lab = 0
        self.vm = []

    def e(self, s):
        self.lines.append("    " + s)

    def label(self, l):
        self.lines.append(l + ":")

    def newlabel(self, stem):
        self.lab += 1
        return "L_%s_%s_%d" % (self.name, stem, self.lab)

    def vmem(self, text, tag=None):
        self.e(text)
        self.vm.append(tag)

    def vwait(self, tag, extra=""):
        idx = max(i for i, t in enumerate(self.vm) if t == tag)
        n = len(self.vm) - 1 - idx
        self.e("s_waitcnt vmcnt(%d)%s" % (min(n, 63), extra))

    def stamp(self):
        if EXP.get("stamp"):
            self.nst = getattr(self, "nst", 0)
            self.e("s_memtime s[%d:%d]" % (70 + 2 * self.nst, 71 + 2 * self.nst))
            self.nst += 1

    def stamp_out(self, s_w):
        if not EXP.get("stamp"):
            return
        sv = self.nst
        self.e("s_waitcnt vmcnt(0)")
        self.stamp()
        self.e("s_waitcnt lgkmcnt(0)")
        self.srd(40, P_WS, 40 * MB, 1 << 20)
        for i in range(self.nst):
            self.e("v_mov_b32 v%d, s%d" % (8 + i, 70 + 2 * i))
        self.e("s_lshl_b32 s51, s2, 8")
        self.e("s_lshl_b32 s54, s%d, 6" % s_w)
        self.e("s_add_u32 s51, s51, s54")
        self.e("v_mov_b32 v30, 0")
        for q in range(3):
            self.e("buffer_store_dwordx4 v[%d:%d], v30, s[40:43], s51 offen offset:%d" % (8 + 4 * q, 11 + 4 * q, 16 * q))
        self.nst = sv

    def prologue(self, nwg):
        self.lines.append(".globl %s" % self.name)
        self.lines.append(".p2align 8")
        self.lines.append(".type %s,@function" % self.name)
        self.lines.append("%s:" % self.name)
        self.e("s_cmp_ge_u32 s2, %d" % nwg)
        self.e("s_cbranch_scc1 L_%s_end" % self.name)
        self.e("s_load_dwordx16 s[4:19], s[0:1], 0")
        self.e("s_load_dwordx4 s[20:23], s[0:1], 64")
        self.e("s_load_dwordx2 s[24:25], s[0:1], 80")

    def srd(self, dst, ptr, off, size):
        if off:
            self.e("s_add_u32 s%d, s%d, %s" % (dst, ptr, hx(off)))
            self.e("s_addc_u32 s%d, s%d, 0" % (dst + 1, ptr + 1))
            self.e("s_and_b32 s%d, s%d, 0xffff" % (dst + 1, dst + 1))
        else:
            self.e("s_mov_b32 s%d, s%d" % (dst, ptr))
            self.e("s_and_b32 s%d, s%d, 0xffff" % (dst + 1, ptr + 1))
        self.e("s_mov_b32 s%d, %s" % (dst + 2, hx(size)))
        self.e("s_mov_b32 s%d, 0x00020000" % (dst + 3))

    def end(self):
        self.label("L_%s_end" % self.name)
        self.e("s_endpgm")

    def desc(self):
        acc = (self.nvgpr + 3) // 4 * 4
        nfv = acc + self.nagpr if self.nagpr else self.nvgpr
        return "\n".join([
            ".amdhsa_kernel %s" % self.name,
            "  .amdhsa_next_free_vgpr %d" % nfv,
            "  .amdhsa_next_free_sgpr %d" % self.nsgpr,
            "  .amdhsa_accum_offset %d" % acc,
            "  .amdhsa_group_segment_fixed_size 0",
            "  .amdhsa_kernarg_size 88",
            "  .amdhsa_user_sgpr_count 2",
            "  .amdhsa_user_sgpr_kernarg_segment_ptr 1",
            "  .amdhsa_system_sgpr_workgroup_id_x 1",
            ".end_amdhsa_kernel",
        ])


def vr(a, n=1):
    return "v%d" % a if n == 1 else "v[%d:%d]" % (a, a + n - 1)


def ar(a, n=1):
    return "a%d" % a if n == 1 else "a[%d:%d]" % (a, a + n - 1)


def sr(a, n=1):
    return "s%d" % a if n == 1 else "s[%d:%d]" % (a, a + n - 1)


def src_srd(k, dst, src, size):
    if src[0] == 'arg':
        k.srd(dst, src[1], 0, size)
    else:
        k.srd(dst, P_WS, src[1], size)


def round_pair(out, lo, hi, tmp):
    out.append("v_cvt_pk_bf16_f32 %s, %s, %s" % (vr(tmp), vr(lo), vr(hi)))
    out.append("v_lshlrev_b32 %s, 16, %s" % (vr(lo), vr(tmp)))
    out.append("v_and_b32 %s, 0xffff0000, %s" % (vr(hi), vr(tmp)))


SEG_ALL = [(P_WQKV, D, 3 * D, WS_WQ, 1, 8, WS_CSQ), (P_W1, D, F, WS_W1, 1, 8, WS_CS1),
           (P_WO, D, D, WS_WO, 1, 8, None), (P_W2, F, D, WS_W2, 4, 7, None)]


def seg_wgs(segs):
    return sum((n // 64) * ch // 2 for _, kd, n, _, ch, _, _ in segs)


def emit_wsegs(k, segs, NX, s_w8):
    nwgs = [(n // 64) * ch // 2 for _, kd, n, _, ch, _, _ in segs]
    s_w, s_team = 89, 90
    k.e("s_and_b32 s%d, s%d, 3" % (s_w, s_w8))
    k.e("s_lshr_b32 s%d, s%d, 2" % (s_team, s_w8))
    SW, SO, SS = 28, 32, 36
    s_loc, s_st, s_t, s_nt, s_ks, s_t2, s_ch, s_lb = 80, 81, 83, 84, 85, 86, 87, 88
    base = NX
    for idx, (ptr, kd, n, wsoff, ch, kpw, cs) in enumerate(segs):
        lnext = k.newlabel("seg")
        if idx < len(segs) - 1:
            k.e("s_cmp_ge_u32 s2, %d" % (base + nwgs[idx]))
            k.e("s_cbranch_scc1 %s" % lnext)
        KSN = kd // 16
        st = n * 2
        k.e("s_sub_u32 s%d, s2, %d" % (s_loc, base))
        k.e("s_lshl_b32 s%d, s%d, 1" % (s_loc, s_loc))
        k.e("s_add_u32 s%d, s%d, s%d" % (s_loc, s_loc, s_team))
        k.srd(SW, ptr, 0, kd * n * 2)
        k.srd(SO, P_WS, wsoff, kd * n * 2)
        if ch == 1:
            k.e("s_mov_b32 s%d, s%d" % (s_nt, s_loc))
            k.e("s_mul_i32 s%d, s%d, %d" % (s_ks, s_w, kpw))
        else:
            k.e("s_lshr_b32 s%d, s%d, 2" % (s_nt, s_loc))
            k.e("s_and_b32 s%d, s%d, 3" % (s_ch, s_loc))
            k.e("s_lshl_b32 s%d, s%d, 2" % (s_ch, s_ch))
            k.e("s_add_u32 s%d, s%d, s%d" % (s_ch, s_ch, s_w))
            k.e("s_mul_i32 s%d, s%d, %d" % (s_ks, s_ch, kpw))
        k.e("v_lshrrev_b32 v3, 3, v1")
        k.e("v_mul_u32_u24 v3, %d, v3" % st)
        k.e("v_and_b32 v4, 7, v1")
        k.e("v_lshl_add_u32 v3, v4, 4, v3")
        k.e("s_mul_i32 s%d, s%d, %d" % (s_t2, s_ks, 16 * st))
        k.e("s_lshl_b32 s%d, s%d, 7" % (s_t, s_nt))
        k.e("s_add_u32 s%d, s%d, s%d" % (s_t2, s_t2, s_t))
        k.e("s_lshl_b32 s%d, s%d, 14" % (s_lb, s_w8))
        for i in range(2 * kpw):
            k.e("s_add_u32 m0, s%d, %d" % (s_lb, i * 1024))
            k.e("s_nop 0")
            k.e("buffer_load_dwordx4 v3, %s, s%d offen lds" % (sr(SW, 4), s_t2))
            k.e("s_add_u32 s%d, s%d, %d" % (s_t2, s_t2, 8 * st))
        k.e("v_lshrrev_b32 v6, 4, v1")
        k.e("v_and_b32 v7, 15, v1")
        k.e("v_lshrrev_b32 v8, 2, v7")
        k.e("v_and_b32 v9, 3, v7")
        k.e("v_lshrrev_b32 v10, 1, v6")
        k.e("v_lshl_add_u32 v10, v10, 3, v8")
        k.e("v_lshlrev_b32 v10, 7, v10")
        k.e("v_and_b32 v11, 1, v6")
        k.e("v_lshlrev_b32 v11, 5, v11")
        k.e("v_lshl_add_u32 v11, v9, 3, v11")
        k.e("v_add3_u32 v10, v10, v11, s%d" % s_lb)
        k.e("v_lshlrev_b32 v5, 4, v1")
        k.e("s_mul_i32 s%d, s%d, %d" % (s_t, s_nt, 2 * KSN))
        k.e("s_add_u32 s%d, s%d, s%d" % (s_t, s_t, s_ks))
        k.e("s_lshl_b32 s%d, s%d, 10" % (s_t, s_t))
        k.e("v_mov_b32 v12, 0")
        k.e("v_mov_b32 v13, 0")
        k.e("v_mov_b32 v14, 0x3f803f80")
        nst = 0
        for i in range(kpw):
            k.e("s_waitcnt vmcnt(%d)" % (2 * (kpw - 1 - i) + nst))
            for t in range(2):
                d = 16 + 8 * (i & 1) + 4 * t
                k.e("ds_read_b64_tr_b16 %s, v10 offset:%d" % (vr(d, 2), i * 2048 + t * 64))
                k.e("ds_read_b64_tr_b16 %s, v10 offset:%d" % (vr(d + 2, 2), i * 2048 + t * 64 + 512))
            k.e("s_waitcnt lgkmcnt(0)")
            for t in range(2):
                d = 16 + 8 * (i & 1) + 4 * t
                k.e("s_add_u32 s%d, s%d, %d" % (s_t2, s_t, (t * KSN + i) * 1024))
                k.e("buffer_store_dwordx4 %s, v5, %s, s%d offen" % (vr(d, 4), sr(SO, 4), s_t2))
                nst += 1
                if cs is not None:
                    for j in range(4):
                        k.e("v_dot2_f32_bf16 v%d, v%d, v14, v%d" % (12 + t, d + j, 12 + t))
        if cs is not None:
            k.e("s_nop 3")
            k.e("v_mov_b32 v32, v12")
            k.e("v_mov_b32 v33, v13")
            k.e("s_nop 1")
            k.e("v_permlane32_swap_b32 v12, v32")
            k.e("v_permlane32_swap_b32 v13, v33")
            k.e("s_nop 1")
            k.e("v_add_f32 v12, v12, v32")
            k.e("v_add_f32 v13, v13, v33")
            k.e("v_cmp_gt_u32 vcc, 32, v1")
            k.e("s_nop 1")
            k.e("v_cndmask_b32 v12, v13, v12, vcc")
            k.e("v_lshlrev_b32 v7, 2, v1")
            k.e("s_lshl_b32 s%d, s%d, 8" % (s_t, s_w8))
            k.e("v_add_u32 v8, s%d, v7" % s_t)
            k.e("v_add_u32 v8, 131072, v8")
            k.e("ds_write_b32 v8, v12")
            k.e("s_waitcnt lgkmcnt(0)")
            k.e("s_barrier")
            k.e("s_lshl_b32 s%d, s%d, 10" % (s_t, s_team))
            k.e("v_add_u32 v8, s%d, v7" % s_t)
            k.e("v_add_u32 v8, 131072, v8")
            for w2 in range(4):
                k.e("ds_read_b32 v%d, v8 offset:%d" % (16 + w2, 256 * w2))
            k.e("s_waitcnt lgkmcnt(0)")
            k.e("v_add_f32 v16, v16, v17")
            k.e("v_add_f32 v18, v18, v19")
            k.e("v_add_f32 v16, v16, v18")
            k.srd(SS, P_WS, cs, n * 4)
            k.e("s_lshl_b32 s%d, s%d, 8" % (s_t, s_nt))
            k.e("buffer_store_dword v16, v7, %s, s%d offen" % (sr(SS, 4), s_t))
        k.e("s_endpgm")
        k.label(lnext)
        base += nwgs[idx]


def prep(name):
    k = K(name, 128)
    segs = SEG_ALL[:1]
    NX = 128
    NWG = seg_wgs(segs) + NX
    k.prologue(NWG)
    SW, SO, SS = 28, 32, 36
    s_loc, s_st, s_w, s_t, s_nt, s_ks, s_t2, s_ch, s_lb = 48, 49, 52, 53, 54, 55, 56, 57, 58
    k.e("v_lshrrev_b32 v2, 6, v0")
    k.e("v_and_b32 v1, 63, v0")
    k.e("s_nop 0")
    k.e("v_readfirstlane_b32 s%d, v2" % s_w)
    k.e("s_waitcnt lgkmcnt(0)")
    lx = k.newlabel("xpart")
    k.e("s_cmp_lt_u32 s2, %d" % NX)
    k.e("s_cbranch_scc1 %s" % lx)
    emit_wsegs(k, segs, NX, s_w)
    k.label(lx)
    k.srd(SW, P_AX, 0, S * D * 2)
    k.srd(SO, P_WS, WS_X0, S * D * 2)
    k.srd(SS, P_WS, WS_ST0, S * 256)
    k.e("s_lshl_b32 s%d, s2, 2" % s_t)
    k.e("s_add_u32 s%d, s%d, s%d" % (s_t, s_t, s_w))
    k.e("s_lshr_b32 s%d, s%d, 3" % (s_nt, s_t))
    k.e("s_and_b32 s%d, s%d, 7" % (s_ks, s_t))
    k.e("v_lshrrev_b32 v5, 5, v1")
    k.e("v_and_b32 v4, 31, v1")
    k.e("v_lshlrev_b32 v3, 10, v4")
    k.e("v_lshl_add_u32 v3, v5, 4, v3")
    k.e("s_lshl_b32 s%d, s%d, 15" % (s_t2, s_nt))
    k.e("s_lshl_b32 s%d, s%d, 7" % (s_st, s_ks))
    k.e("s_add_u32 s%d, s%d, s%d" % (s_t2, s_t2, s_st))
    for i in range(4):
        k.e("buffer_load_dwordx4 %s, v3, %s, s%d offen offset:%d" % (vr(8 + 4 * i, 4), sr(SW, 4), s_t2, 32 * i))
    k.e("v_lshlrev_b32 v6, 4, v1")
    k.e("s_lshl_b32 s%d, s%d, 12" % (s_t, s_t))
    k.e("v_mov_b32 v7, 0x3f803f80")
    for r in range(24, 28):
        k.e("v_mov_b32 v%d, 0" % r)
    k.e("v_lshlrev_b32 v28, 4, v4")
    k.e("v_lshl_add_u32 v28, v5, 3, v28")
    k.e("s_lshl_b32 s%d, s%d, 9" % (s_t2, s_nt))
    k.e("s_lshl_b32 s%d, s%d, 16" % (s_st, s_ks))
    k.e("s_add_u32 s%d, s%d, s%d" % (s_t2, s_t2, s_st))
    k.e("s_add_u32 s%d, s%d, 32768" % (s_st, s_t2))
    for i in range(4):
        k.e("s_waitcnt vmcnt(3)")
        k.e("buffer_store_dwordx4 %s, v6, %s, s%d offen offset:%d" % (vr(8 + 4 * i, 4), sr(SO, 4), s_t, 1024 * i))
        a = 24 + 2 * (i >> 1)
        for j in range(4):
            k.e("v_dot2_f32_bf16 v%d, v%d, v7, v%d" % (a, 8 + 4 * i + j, a))
            k.e("v_dot2_f32_bf16 v%d, v%d, v%d, v%d" % (a + 1, 8 + 4 * i + j, 8 + 4 * i + j, a + 1))
    k.e("s_nop 3")
    k.e("buffer_store_dwordx2 v[24:25], v28, %s, s%d offen" % (sr(SS, 4), s_t2))
    k.e("buffer_store_dwordx2 v[26:27], v28, %s, s%d offen" % (sr(SS, 4), s_st))
    k.end()
    return k, NWG, 256, 65536 + 1024


def lngemm(name, xoff, stoff, wsoff, csoff, N, kind, extra=None):
    NCB = N // 256
    NWG = 32 * NCB
    NTOT = NWG + (seg_wgs(extra) if extra else 0)
    k = K(name, 256, 256)
    k.prologue(NTOT)
    SX, SW, SO, SB, SS, SC = 28, 32, 36, 40, 44, 64
    s_rb, s_cb, s_w, s_t, s_wbase, s_t2, s_scale, s_obase, s_nb = 48, 49, 50, 51, 52, 54, 55, 56, 57
    STL = 65536
    magic = (1 << 32) // (8 * NCB) + 1
    k.e("s_and_b32 s%d, s2, 7" % s_t)
    k.e("s_mul_i32 s%d, s%d, %d" % (s_t, s_t, 4 * NCB))
    k.e("s_lshr_b32 s%d, s2, 3" % s_t2)
    k.e("s_add_u32 s%d, s%d, s%d" % (s_t2, s_t2, s_t))
    k.e("s_mov_b32 s%d, %s" % (s_t, hx(magic)))
    k.e("s_mul_hi_u32 s%d, s%d, s%d" % (s_rb, s_t2, s_t))
    k.e("s_mul_i32 s%d, s%d, %d" % (s_t, s_rb, 8 * NCB))
    k.e("s_sub_u32 s%d, s%d, s%d" % (s_t2, s_t2, s_t))
    k.e("s_lshr_b32 s%d, s%d, 3" % (s_cb, s_t2))
    k.e("s_and_b32 s%d, s%d, 7" % (s_t2, s_t2))
    k.e("s_lshl_b32 s%d, s%d, 3" % (s_rb, s_rb))
    k.e("s_add_u32 s%d, s%d, s%d" % (s_rb, s_rb, s_t2))
    k.e("v_lshrrev_b32 v2, 6, v0")
    k.e("v_and_b32 v1, 63, v0")
    k.e("v_lshrrev_b32 v5, 5, v1")
    k.e("v_readfirstlane_b32 s%d, v2" % s_w)
    k.e("v_lshlrev_b32 v3, 4, v1")
    k.e("s_waitcnt lgkmcnt(0)")
    if extra:
        lmain = k.newlabel("main")
        k.e("s_cmp_lt_u32 s2, %d" % NWG)
        k.e("s_cbranch_scc1 %s" % lmain)
        emit_wsegs(k, extra, NWG, s_w)
        k.label(lmain)
    k.srd(SX, P_WS, xoff, S * D * 2)
    k.srd(SW, P_WS, wsoff, D * N * 2)
    k.srd(SS, P_WS, stoff, S * 256)
    k.srd(SC, P_WS, csoff, N * 4)
    k.stamp()
    k.e("s_lshl_b32 s%d, s%d, 16" % (s_t, s_rb))
    k.e("s_lshl_b32 s%d, s%d, 14" % (s_t2, s_w))
    k.e("s_add_u32 s%d, s%d, s%d" % (s_t, s_t, s_t2))
    for q in range(4):
        k.e("s_add_u32 m0, s%d, %d" % (s_t2, q * 4096))
        k.e("s_add_u32 s%d, s%d, %d" % (s_t + 8, s_t, q * 4096))
        for i in range(4):
            k.vmem("buffer_load_dwordx4 v3, %s, s%d offen offset:%d lds" % (sr(SX, 4), s_t + 8, i * 1024), "x")
    k.e("s_lshl_b32 s%d, s%d, 3" % (s_t, s_cb))
    k.e("s_lshl_b32 s%d, s%d, 1" % (s_t2, s_w))
    k.e("s_add_u32 s%d, s%d, s%d" % (s_t, s_t, s_t2))
    k.e("s_lshl_b32 s%d, s%d, 15" % (s_wbase, s_t))

    def wload(ct, ks):
        sg = s_t + 10 + ct
        if ks % 4 == 0:
            k.e("s_add_u32 s%d, s%d, %d" % (sg, s_wbase, ct * 32768 + ks * 1024))
        k.vmem("buffer_load_dwordx4 %s, v3, %s, s%d offen offset:%d" % (ar((ct * 32 + ks) * 4, 4), sr(SW, 4), sg, (ks % 4) * 1024), ("w", ct, ks))

    LA = EXP.get("la", 8)
    for ks in range(LA):
        wload(0, ks)
    ST = 64
    ACC = 128
    for r in range(64):
        k.e("v_mov_b32 v%d, 0" % (ACC + r))
    k.stamp()
    k.vwait("x")
    k.e("s_barrier")
    k.stamp()

    def stload(i):
        if i == 0:
            k.e("s_lshl_b32 s%d, s%d, 10" % (s_t + 9, s_rb))
        k.vmem("buffer_load_dwordx4 %s, v3, %s, s%d offen" % (vr(ST + 4 * i, 4), sr(SS, 4), s_t + 9), "st")
        k.e("s_add_u32 s%d, s%d, 32768" % (s_t + 9, s_t + 9))
    k.e("s_lshl_b32 s%d, s%d, 8" % (s_nb, s_cb))
    k.e("s_lshl_b32 s%d, s%d, 6" % (s_t2, s_w))
    k.e("s_add_u32 s%d, s%d, s%d" % (s_nb, s_nb, s_t2))
    FRG = 32

    def xreads(ks):
        b = FRG + 8 * (ks & 3)
        for rt in range(2):
            k.e("ds_read_b128 %s, v3 offset:%d" % (vr(b + 4 * rt, 4), rt * 32768 + ks * 1024))

    def mfma(transposed, rt, ct, ks):
        a = ACC + 16 * (2 * rt + ct)
        b = FRG + 8 * (ks & 3)
        xf, wf = vr(b + 4 * rt, 4), ar((ct * 32 + ks) * 4, 4)
        if transposed:
            k.e("v_mfma_f32_32x32x16_bf16 %s, %s, %s, %s" % (vr(a, 16), wf, xf, vr(a, 16)))
        else:
            k.e("v_mfma_f32_32x32x16_bf16 %s, %s, %s, %s" % (vr(a, 16), xf, wf, vr(a, 16)))

    def stats_math(scale_sgpr):
        k.vwait("st")
        for i in range(4, 32):
            k.e("v_pk_add_f32 %s, %s, %s" % (vr(ST + 2 * (i & 3), 2), vr(ST + 2 * (i & 3), 2), vr(ST + 2 * i, 2)))
        k.e("v_pk_add_f32 v[64:65], v[64:65], v[66:67]")
        k.e("v_pk_add_f32 v[68:69], v[68:69], v[70:71]")
        k.e("v_pk_add_f32 v[64:65], v[64:65], v[68:69]")
        k.e("v_mul_f32 v17, %s, v64" % hx(f32bits(1.0 / D)))
        k.e("v_mul_f32 v16, %s, v65" % hx(f32bits(1.0 / D)))
        k.e("v_fma_f32 v16, -v17, v17, v16")
        k.e("v_max_f32 v16, 0, v16")
        k.e("v_cvt_pk_bf16_f32 v18, v17, v16")
        k.e("v_lshlrev_b32 v17, 16, v18")
        k.e("v_and_b32 v16, 0xffff0000, v18")
        k.e("v_add_f32 v16, %s, v16" % hx(f32bits(1e-5)))
        k.e("v_cvt_pk_bf16_f32 v18, v16, v16")
        k.e("v_and_b32 v16, 0xffff0000, v18")
        k.e("v_sqrt_f32 v16, v16")
        k.e("s_nop 0")
        k.e("v_cvt_pk_bf16_f32 v18, v16, v16")
        k.e("v_and_b32 v16, 0xffff0000, v18")
        k.e("v_rcp_f32 v16, v16")
        k.e("s_nop 0")
        if scale_sgpr is not None:
            k.e("v_mul_f32 v16, s%d, v16" % scale_sgpr)
        k.e("v_mul_f32 v17, v17, v16")
        k.e("v_sub_f32 v17, 0, v17")

    def phase1(transposed):
        xreads(0)
        xreads(1)
        for ks in range(32):
            if ks + 2 < 32:
                xreads(ks + 2)
            if ks + LA < 32:
                wload(0, ks + LA)
            else:
                wload(1, ks + LA - 32)
            if 8 <= ks < 24:
                stload(ks - 8)
            k.vwait(("w", 0, ks), " lgkmcnt(%d)" % (2 * min(2, 31 - ks)))
            for rt in range(2):
                mfma(transposed, rt, 0, ks)

    def phase2(transposed, epi):
        xreads(0)
        xreads(1)
        n = len(epi)
        pos = 0
        for ks in range(32):
            if ks + 2 < 32:
                xreads(ks + 2)
            if ks + LA < 32:
                wload(1, ks + LA)
            k.vwait(("w", 1, ks), " lgkmcnt(%d)" % (2 * min(2, 31 - ks)))
            for rt in range(2):
                mfma(transposed, rt, 1, ks)
            if ks >= 3:
                tgt = n * (ks - 2) // 29
                while pos < tgt:
                    ins = epi[pos]
                    if ins.startswith("buffer_store"):
                        k.vmem(ins, "store")
                    else:
                        k.e(ins)
                    pos += 1
        assert pos == n
        k.e("s_nop 15")
        k.e("s_nop 3")

    def emit(lst):
        for ins in lst:
            if ins.startswith("buffer_store"):
                k.vmem(ins, "store")
            else:
                k.e(ins)

    def load_cs_T():
        k.e("v_lshlrev_b32 v28, 4, v5")
        k.e("s_lshl_b32 s%d, s%d, 2" % (s_t, s_nb))
        for ct in range(2):
            for g in range(4):
                k.vmem("buffer_load_dwordx4 %s, v28, %s, s%d offen offset:%d" % (vr(CSR + 16 * ct + 4 * g, 4), sr(SC, 4), s_t, (ct * 32 + 8 * g) * 4), "cs")

    CSR = 192

    def t_ab():
        k.e("v_mov_b32 v18, v16")
        k.e("v_mov_b32 v19, v17")
        k.e("s_nop 1")
        k.e("v_permlane32_swap_b32 v16, v18")
        k.e("v_permlane32_swap_b32 v17, v19")
        k.e("s_nop 1")
        for rt, (aa, bb) in enumerate(((16, 17), (18, 19))):
            k.e("v_mov_b32 v%d, v%d" % (20 + 4 * rt, aa))
            k.e("v_mov_b32 v%d, v%d" % (21 + 4 * rt, aa))
            k.e("v_mov_b32 v%d, v%d" % (22 + 4 * rt, bb))
            k.e("v_mov_b32 v%d, v%d" % (23 + 4 * rt, bb))

    def ln_apply_T(out, r0, rt, csr):
        for p in range(2):
            out.append("v_pk_mul_f32 %s, %s, %s" % (vr(r0 + 2 * p, 2), vr(r0 + 2 * p, 2), vr(20 + 4 * rt, 2)))
        for p in range(2):
            out.append("v_pk_fma_f32 %s, %s, %s, %s" % (vr(r0 + 2 * p, 2), vr(csr + 2 * p, 2), vr(22 + 4 * rt, 2), vr(r0 + 2 * p, 2)))

    if kind == 'qkv':
        lv = k.newlabel("vpath")
        k.e("s_cmp_ge_u32 s%d, 4" % s_cb)
        k.e("s_cbranch_scc1 %s" % lv)
        vm_save = list(k.vm)
        load_cs_T()
        k.e("s_cmp_lt_u32 s%d, 2" % s_cb)
        k.e("s_cselect_b32 s%d, %s, 1.0" % (s_scale, hx(f32bits(QSCALE))))
        k.e("s_cselect_b32 s%d, %d, %d" % (s_obase, WS_Q, WS_K))
        k.srd(SO, P_WS, 0, 6 * MB)
        k.e("s_and_b32 s%d, s%d, 1" % (s_t, s_cb))
        k.e("s_lshl_b32 s%d, s%d, 20" % (s_t, s_t))
        k.e("s_add_u32 s%d, s%d, s%d" % (s_obase, s_obase, s_t))
        k.e("s_lshl_b32 s%d, s%d, 18" % (s_t, s_w))
        k.e("s_add_u32 s%d, s%d, s%d" % (s_obase, s_obase, s_t))
        k.e("s_lshl_b32 s%d, s%d, 11" % (s_t, s_rb))
        k.e("s_add_u32 s%d, s%d, s%d" % (s_obase, s_obase, s_t))
        k.e("v_and_b32 v29, 31, v1")
        k.e("v_lshlrev_b32 v29, 4, v29")
        k.e("v_lshl_add_u32 v29, v5, 3, v29")
        phase1(True)
        stats_math(s_scale)
        t_ab()
        k.vwait("cs")

        def epi_qk(ct):
            out = []
            for rt in range(2):
                a = ACC + 16 * (2 * rt + ct)
                for g in range(4):
                    r0 = a + 4 * g
                    ln_apply_T(out, r0, rt, CSR + 16 * ct + 4 * g)
                    t0 = 8 + 2 * ((rt * 4 + g) & 3)
                    out.append("v_cvt_pk_bf16_f32 v%d, %s, %s" % (t0, vr(r0), vr(r0 + 1)))
                    out.append("v_cvt_pk_bf16_f32 v%d, %s, %s" % (t0 + 1, vr(r0 + 2), vr(r0 + 3)))
                    out.append("s_add_u32 s%d, s%d, %d" % (s_t, s_obase, (ct * 2 + (g >> 1)) * 65536 + rt * 1024 + (g & 1) * 512))
                    out.append("buffer_store_dwordx2 v[%d:%d], v29, %s, s%d offen" % (t0, t0 + 1, sr(SO, 4), s_t))
            return out
        phase2(True, epi_qk(0))
        emit(epi_qk(1))
        k.e("s_endpgm")
        k.label(lv)
        k.vm = vm_save
        k.e("v_and_b32 v28, 31, v1")
        k.e("v_lshlrev_b32 v28, 2, v28")
        k.e("s_lshl_b32 s%d, s%d, 2" % (s_t, s_nb))
        for ct in range(2):
            k.vmem("buffer_load_dword v%d, v28, %s, s%d offen offset:%d" % (30 + ct, sr(SC, 4), s_t, ct * 128), "cs")
        k.srd(SO, P_WS, WS_V, 2 * MB)
        k.e("s_and_b32 s%d, s%d, 1" % (s_t, s_cb))
        k.e("s_lshl_b32 s%d, s%d, 20" % (s_obase, s_t))
        k.e("s_lshl_b32 s%d, s%d, 18" % (s_t, s_w))
        k.e("s_add_u32 s%d, s%d, s%d" % (s_obase, s_obase, s_t))
        k.e("s_lshl_b32 s%d, s%d, 11" % (s_t, s_rb))
        k.e("s_add_u32 s%d, s%d, s%d" % (s_obase, s_obase, s_t))
        k.e("v_bfe_u32 v29, v1, 4, 1")
        k.e("v_lshlrev_b32 v29, 16, v29")
        k.e("v_lshl_add_u32 v29, v5, 8, v29")
        k.e("v_and_b32 v28, 15, v1")
        k.e("v_lshl_add_u32 v29, v28, 4, v29")
        phase1(False)
        stats_math(None)
        k.e("v_lshlrev_b32 v18, 3, v1")
        k.e("s_lshl_b32 s%d, s%d, 9" % (s_t, s_w))
        k.e("s_add_u32 s%d, s%d, %d" % (s_t, s_t, STL))
        k.e("v_add_u32 v18, s%d, v18" % s_t)
        k.e("ds_write_b64 v18, v[16:17]")
        k.e("v_lshlrev_b32 v18, 5, v5")
        k.e("v_add_u32 v18, s%d, v18" % s_t)
        k.e("s_waitcnt lgkmcnt(0)")
        AB = 192
        for rt in range(2):
            for g in range(4):
                for h2 in range(2):
                    k.e("ds_read_b128 %s, v18 offset:%d" % (vr(AB + 32 * rt + 8 * g + 4 * h2, 4), (rt * 32 + 8 * g) * 8 + 16 * h2))
        k.e("s_waitcnt lgkmcnt(0)")
        k.vwait("cs")

        def epi_v(ct):
            out = []
            for rt in range(2):
                a = ACC + 16 * (2 * rt + ct)
                for r in range(16):
                    ab = AB + 32 * rt + 2 * r
                    out.append("v_mul_f32 %s, %s, %s" % (vr(a + r), vr(a + r), vr(ab)))
                    out.append("v_fma_f32 %s, %s, v%d, %s" % (vr(a + r), vr(ab + 1), 30 + ct, vr(a + r)))
                for half in range(2):
                    t0 = 8 + 4 * half
                    for j in range(4):
                        r0 = a + 8 * half + 2 * j
                        out.append("v_cvt_pk_bf16_f32 v%d, %s, %s" % (t0 + j, vr(r0), vr(r0 + 1)))
                    out.append("s_add_u32 s%d, s%d, %d" % (s_t, s_obase, ct * 2 * 65536 + (rt * 2 + half) * 512))
                    out.append("buffer_store_dwordx4 v[%d:%d], v29, %s, s%d offen" % (t0, t0 + 3, sr(SO, 4), s_t))
                    out.append("s_nop 1")
            return out
        phase2(False, epi_v(0))
        emit(epi_v(1))
    else:
        load_cs_T()
        k.srd(SB, P_B1, 0, F * 2)
        k.srd(SO, P_WS, WS_H, S * F * 2)
        k.e("s_lshl_b32 s%d, s%d, 1" % (s_scale, s_nb))
        k.e("v_lshlrev_b32 v28, 3, v5")
        BI = 224
        for ct in range(2):
            for g in range(4):
                k.vmem("buffer_load_dwordx2 %s, v28, %s, s%d offen offset:%d" % (vr(BI + 2 * (4 * ct + g), 2), sr(SB, 4), s_scale, (ct * 32 + 8 * g) * 2), "cs")
        k.e("s_mul_i32 s%d, s%d, %d" % (s_obase, s_rb, 2 * 112 * 1024))
        k.e("s_lshl_b32 s%d, s%d, 6" % (s_t, s_nb))
        k.e("s_add_u32 s%d, s%d, s%d" % (s_obase, s_obase, s_t))
        k.e("v_and_b32 v29, 31, v1")
        k.e("v_lshlrev_b32 v29, 4, v29")
        k.e("v_add_u32 v29, v29, v28")
        phase1(True)
        k.stamp()
        stats_math(None)
        t_ab()
        k.vwait("cs")
        BF = 96
        for q in range(8):
            for h2 in range(2):
                k.e("v_lshlrev_b32 %s, 16, %s" % (vr(BF + 4 * q + 2 * h2), vr(BI + 2 * q + h2)))
                k.e("v_and_b32 %s, 0xffff0000, %s" % (vr(BF + 4 * q + 2 * h2 + 1), vr(BI + 2 * q + h2)))
        c1 = -2.0 * 0.7978845608028654 * 1.4426950408889634
        k.e("v_mov_b32 v240, %s" % hx(f32bits(c1 * 0.044715)))
        k.e("v_mov_b32 v241, %s" % hx(f32bits(c1 * 0.044715)))
        k.e("v_mov_b32 v242, %s" % hx(f32bits(c1)))
        k.e("v_mov_b32 v243, %s" % hx(f32bits(c1)))
        k.e("v_mov_b32 v244, 1.0")
        k.e("v_mov_b32 v245, 1.0")

        def epi_f(ct):
            out = []
            for rt in range(2):
                a = ACC + 16 * (2 * rt + ct)
                for g in range(4):
                    r0 = a + 4 * g
                    bq = BF + 4 * (4 * ct + g)
                    ln_apply_T(out, r0, rt, CSR + 16 * ct + 4 * g)
                    for p in range(2):
                        out.append("v_pk_add_f32 %s, %s, %s" % (vr(r0 + 2 * p, 2), vr(r0 + 2 * p, 2), vr(bq + 2 * p, 2)))
                    for p in range(2):
                        round_pair(out, r0 + 2 * p, r0 + 2 * p + 1, 8 + p)
                    T = 10
                    for p in range(2):
                        out.append("v_pk_mul_f32 %s, %s, %s" % (vr(T + 2 * p, 2), vr(r0 + 2 * p, 2), vr(r0 + 2 * p, 2)))
                    for p in range(2):
                        out.append("v_pk_fma_f32 %s, %s, v[240:241], v[242:243]" % (vr(T + 2 * p, 2), vr(T + 2 * p, 2)))
                    for p in range(2):
                        out.append("v_pk_mul_f32 %s, %s, %s" % (vr(T + 2 * p, 2), vr(T + 2 * p, 2), vr(r0 + 2 * p, 2)))
                    for j in range(4):
                        out.append("v_exp_f32 v%d, v%d" % (T + j, T + j))
                    out.append("s_nop 0")
                    for p in range(2):
                        out.append("v_pk_add_f32 %s, %s, v[244:245]" % (vr(T + 2 * p, 2), vr(T + 2 * p, 2)))
                    for j in range(4):
                        out.append("v_rcp_f32 v%d, v%d" % (T + j, T + j))
                    out.append("s_nop 0")
                    for p in range(2):
                        out.append("v_pk_mul_f32 %s, %s, %s" % (vr(r0 + 2 * p, 2), vr(r0 + 2 * p, 2), vr(T + 2 * p, 2)))
                    t0 = 246 + 2 * (g & 1)
                    out.append("v_cvt_pk_bf16_f32 v%d, %s, %s" % (t0, vr(r0), vr(r0 + 1)))
                    out.append("v_cvt_pk_bf16_f32 v%d, %s, %s" % (t0 + 1, vr(r0 + 2), vr(r0 + 3)))
                    out.append("s_add_u32 s%d, s%d, %d" % (s_t, s_obase, rt * 112 * 1024 + (ct * 2 + (g >> 1)) * 1024 + (g & 1) * 512))
                    out.append("buffer_store_dwordx2 v[%d:%d], v29, %s, s%d offen" % (t0, t0 + 1, sr(SO, 4), s_t))
            return out
        k.stamp()
        phase2(True, epi_f(0))
        k.stamp()
        emit(epi_f(1))
        k.stamp()
        k.stamp_out(s_w)
    k.end()
    return k, NTOT, 256, 65536 + 2048


def lngemm8(name, xoff, stoff, wsoff, csoff, N, kind, extra=None):
    NCB = N // 256
    NWG = 32 * NCB
    NTOT = NWG + (seg_wgs(extra) if extra else 0)
    k = K(name, 128, 128)
    k.prologue(NTOT)
    e = k.e
    SX, SW, SO, SB, SS, SC = 28, 32, 36, 40, 44, 64
    s_rb, s_cb, s_w, s_t, s_wbase, s_t2, s_scale, s_obase, s_nb, s_T = 48, 49, 50, 51, 52, 54, 55, 56, 57, 58
    STL = 65536
    magic = (1 << 32) // (8 * NCB) + 1
    e("s_and_b32 s%d, s2, 7" % s_t)
    e("s_mul_i32 s%d, s%d, %d" % (s_t, s_t, 4 * NCB))
    e("s_lshr_b32 s%d, s2, 3" % s_t2)
    e("s_add_u32 s%d, s%d, s%d" % (s_t2, s_t2, s_t))
    e("s_mov_b32 s%d, %s" % (s_t, hx(magic)))
    e("s_mul_hi_u32 s%d, s%d, s%d" % (s_rb, s_t2, s_t))
    e("s_mul_i32 s%d, s%d, %d" % (s_t, s_rb, 8 * NCB))
    e("s_sub_u32 s%d, s%d, s%d" % (s_t2, s_t2, s_t))
    e("s_lshr_b32 s%d, s%d, 3" % (s_cb, s_t2))
    e("s_and_b32 s%d, s%d, 7" % (s_t2, s_t2))
    e("s_lshl_b32 s%d, s%d, 3" % (s_rb, s_rb))
    e("s_add_u32 s%d, s%d, s%d" % (s_rb, s_rb, s_t2))
    e("v_lshrrev_b32 v2, 6, v0")
    e("v_and_b32 v1, 63, v0")
    e("v_lshrrev_b32 v5, 5, v1")
    e("v_readfirstlane_b32 s%d, v2" % s_w)
    e("v_lshlrev_b32 v3, 4, v1")
    e("s_waitcnt lgkmcnt(0)")
    if extra:
        lmain = k.newlabel("main")
        e("s_cmp_lt_u32 s2, %d" % NWG)
        e("s_cbranch_scc1 %s" % lmain)
        e("s_cmp_ge_u32 s%d, 4" % s_w)
        e("s_cbranch_scc1 L_%s_end" % name)
        emit_wsegs(k, extra, NWG, s_w)
        k.label(lmain)
    k.srd(SX, P_WS, xoff, S * D * 2)
    k.srd(SW, P_WS, wsoff, D * N * 2)
    k.srd(SS, P_WS, stoff, S * 256)
    k.srd(SC, P_WS, csoff, N * 4)
    e("s_lshl_b32 s%d, s%d, 16" % (s_t, s_rb))
    e("s_lshl_b32 s%d, s%d, 13" % (s_t2, s_w))
    e("s_add_u32 s%d, s%d, s%d" % (s_t, s_t, s_t2))
    for q in range(2):
        e("s_add_u32 m0, s%d, %d" % (s_t2, q * 4096))
        e("s_add_u32 s%d, s%d, %d" % (s_t + 8, s_t, q * 4096))
        for i in range(4):
            k.vmem("buffer_load_dwordx4 v3, %s, s%d offen offset:%d lds" % (sr(SX, 4), s_t + 8, i * 1024), "x")
    e("s_lshl_b32 s%d, s%d, 3" % (s_T, s_cb))
    e("s_add_u32 s%d, s%d, s%d" % (s_T, s_T, s_w))
    e("s_lshl_b32 s%d, s%d, 15" % (s_wbase, s_T))
    e("s_lshl_b32 s%d, s%d, 5" % (s_nb, s_T))

    def wload(ks):
        sg = s_t + 10
        if ks % 4 == 0:
            e("s_add_u32 s%d, s%d, %d" % (sg, s_wbase, ks * 1024))
        k.vmem("buffer_load_dwordx4 %s, v3, %s, s%d offen offset:%d" % (ar(ks * 4, 4), sr(SW, 4), sg, (ks % 4) * 1024), ("w", ks))

    LA = EXP.get("la8", 8)
    for ks in range(LA):
        wload(ks)
    ST = 64
    e("v_lshrrev_b32 v24, 3, v1")
    e("v_and_b32 v25, 7, v1")
    e("v_lshlrev_b32 v25, 16, v25")
    e("v_lshl_add_u32 v24, v24, 4, v25")
    e("s_lshl_b32 s%d, s%d, 10" % (s_t + 9, s_rb))
    e("s_lshl_b32 s%d, s%d, 7" % (s_t + 8, s_w))
    e("s_add_u32 s%d, s%d, s%d" % (s_t + 9, s_t + 9, s_t + 8))
    k.vmem("buffer_load_dwordx4 %s, v24, %s, s%d offen" % (vr(ST, 4), sr(SS, 4), s_t + 9), "st")
    e("s_add_u32 s%d, s%d, 32768" % (s_t + 9, s_t + 9))
    k.vmem("buffer_load_dwordx4 %s, v24, %s, s%d offen" % (vr(ST + 4, 4), sr(SS, 4), s_t + 9), "st")
    ACC = 32
    FRG = 96
    CSR = 8
    for r in range(32):
        e("v_mov_b32 v%d, 0" % (ACC + r))

    def stload(i):
        if i == 0:
            e("s_lshl_b32 s%d, s%d, 10" % (s_t + 9, s_rb))
        k.vmem("buffer_load_dwordx4 %s, v3, %s, s%d offen" % (vr(ST + 4 * (i % 6), 4), sr(SS, 4), s_t + 9), ("st", i))
        e("s_add_u32 s%d, s%d, 32768" % (s_t + 9, s_t + 9))

    def xreads(ks):
        b = FRG + 8 * (ks & 3)
        for rt in range(2):
            e("ds_read_b128 %s, v3 offset:%d" % (vr(b + 4 * rt, 4), rt * 32768 + ks * 1024))

    def main(tr):
        if EXP.get("prio", 1):
            lp = k.newlabel("prio")
            e("s_cmp_ge_u32 s%d, 4" % s_w)
            e("s_cbranch_scc1 %s" % lp)
            e("s_setprio 2")
            k.label(lp)
        k.vwait("x")
        e("s_barrier")
        xreads(0)
        xreads(1)
        for ks in range(32):
            if ks + 2 < 32:
                xreads(ks + 2)
            if ks + LA < 32:
                wload(ks + LA)
            if ks == 6:
                stats_math()
            if ks == 8:
                e("s_barrier")
            k.vwait(("w", ks), " lgkmcnt(%d)" % (2 * min(2, 31 - ks)))
            b = FRG + 8 * (ks & 3)
            for rt in range(2):
                a = ACC + 16 * rt
                xf, wf = vr(b + 4 * rt, 4), ar(ks * 4, 4)
                if tr:
                    e("v_mfma_f32_32x32x16_bf16 %s, %s, %s, %s" % (vr(a, 16), wf, xf, vr(a, 16)))
                else:
                    e("v_mfma_f32_32x32x16_bf16 %s, %s, %s, %s" % (vr(a, 16), xf, wf, vr(a, 16)))

    def stats_math():
        k.vwait("st")
        e("v_pk_add_f32 v[64:65], v[64:65], v[66:67]")
        e("v_pk_add_f32 v[68:69], v[68:69], v[70:71]")
        e("v_pk_add_f32 v[24:25], v[64:65], v[68:69]")
        for ctl in ("quad_perm:[1,0,3,2]", "quad_perm:[2,3,0,1]", "row_half_mirror"):
            e("s_nop 1")
            e("v_add_f32_dpp v24, v24, v24 %s row_mask:0xf bank_mask:0xf" % ctl)
            e("v_add_f32_dpp v25, v25, v25 %s row_mask:0xf bank_mask:0xf" % ctl)
        e("v_mul_f32 v29, %s, v24" % hx(f32bits(1.0 / D)))
        e("v_mul_f32 v28, %s, v25" % hx(f32bits(1.0 / D)))
        e("v_fma_f32 v28, -v29, v29, v28")
        e("v_max_f32 v28, 0, v28")
        e("v_cvt_pk_bf16_f32 v30, v29, v28")
        e("v_lshlrev_b32 v29, 16, v30")
        e("v_and_b32 v28, 0xffff0000, v30")
        e("v_add_f32 v28, %s, v28" % hx(f32bits(1e-5)))
        e("v_cvt_pk_bf16_f32 v30, v28, v28")
        e("v_and_b32 v28, 0xffff0000, v30")
        e("v_sqrt_f32 v28, v28")
        e("s_nop 0")
        e("v_cvt_pk_bf16_f32 v30, v28, v28")
        e("v_and_b32 v28, 0xffff0000, v30")
        e("v_rcp_f32 v28, v28")
        e("s_nop 0")
        e("v_mul_f32 v29, v29, v28")
        e("v_sub_f32 v29, 0, v29")
        e("v_lshrrev_b32 v30, 3, v1")
        e("v_lshlrev_b32 v30, 3, v30")
        e("s_lshl_b32 s%d, s%d, 6" % (s_t + 8, s_w))
        e("s_add_u32 s%d, s%d, %d" % (s_t + 8, s_t + 8, STL))
        e("v_add_u32 v30, s%d, v30" % (s_t + 8))
        e("ds_write_b64 v30, v[28:29]")
        e("s_waitcnt lgkmcnt(0)")

    def t_ab(scale):
        e("v_lshlrev_b32 v30, 3, v4")
        e("v_add_u32 v30, %d, v30" % STL)
        e("ds_read_b64 v[28:29], v30")
        e("ds_read_b64 v[30:31], v30 offset:256")
        e("s_waitcnt lgkmcnt(0)")
        if scale:
            for r in range(28, 32):
                e("v_mul_f32 v%d, s%d, v%d" % (r, s_scale, r))
        for rt, (aa, bb) in enumerate(((28, 29), (30, 31))):
            e("v_mov_b32 v%d, v%d" % (64 + 4 * rt, aa))
            e("v_mov_b32 v%d, v%d" % (65 + 4 * rt, aa))
            e("v_mov_b32 v%d, v%d" % (66 + 4 * rt, bb))
            e("v_mov_b32 v%d, v%d" % (67 + 4 * rt, bb))

    def ln_T(r0, rt, csr):
        for p in range(2):
            e("v_pk_mul_f32 %s, %s, %s" % (vr(r0 + 2 * p, 2), vr(r0 + 2 * p, 2), vr(64 + 4 * rt, 2)))
        for p in range(2):
            e("v_pk_fma_f32 %s, %s, %s, %s" % (vr(r0 + 2 * p, 2), vr(csr + 2 * p, 2), vr(66 + 4 * rt, 2), vr(r0 + 2 * p, 2)))

    def load_cs_T():
        e("v_lshlrev_b32 v6, 4, v5")
        e("s_lshl_b32 s%d, s%d, 2" % (s_t, s_nb))
        for g in range(4):
            k.vmem("buffer_load_dwordx4 %s, v6, %s, s%d offen offset:%d" % (vr(CSR + 4 * g, 4), sr(SC, 4), s_t, 32 * g), "cs")

    e("v_and_b32 v4, 31, v1")
    e("v_lshlrev_b32 v7, 4, v4")
    e("v_lshl_add_u32 v7, v5, 3, v7")
    if kind == 'qkv':
        lv = k.newlabel("vpath")
        e("s_cmp_ge_u32 s%d, 32" % s_T)
        e("s_cbranch_scc1 %s" % lv)
        vm_save = list(k.vm)
        load_cs_T()
        e("s_cmp_lt_u32 s%d, 16" % s_T)
        e("s_cselect_b32 s%d, %s, 1.0" % (s_scale, hx(f32bits(QSCALE))))
        k.srd(SO, P_WS, 0, 6 * MB)
        e("s_lshl_b32 s%d, s%d, 17" % (s_obase, s_T))
        e("s_lshl_b32 s%d, s%d, 11" % (s_t, s_rb))
        e("s_add_u32 s%d, s%d, s%d" % (s_obase, s_obase, s_t))
        main(True)
        t_ab(True)
        k.vwait("cs")
        e("s_nop 7")
        for rt in range(2):
            for g in range(4):
                r0 = ACC + 16 * rt + 4 * g
                ln_T(r0, rt, CSR + 4 * g)
                t0 = 72 + 2 * ((rt * 4 + g) & 3)
                e("v_cvt_pk_bf16_f32 v%d, %s, %s" % (t0, vr(r0), vr(r0 + 1)))
                e("v_cvt_pk_bf16_f32 v%d, %s, %s" % (t0 + 1, vr(r0 + 2), vr(r0 + 3)))
                e("s_add_u32 s%d, s%d, %d" % (s_t, s_obase, (g >> 1) * 65536 + rt * 1024 + (g & 1) * 512))
                e("buffer_store_dwordx2 v[%d:%d], v7, %s, s%d offen" % (t0, t0 + 1, sr(SO, 4), s_t))
        e("s_endpgm")
        k.label(lv)
        k.vm = vm_save
        e("v_lshlrev_b32 v6, 2, v4")
        e("s_lshl_b32 s%d, s%d, 2" % (s_t, s_nb))
        k.vmem("buffer_load_dword v8, v6, %s, s%d offen" % (sr(SC, 4), s_t), "cs")
        k.srd(SO, P_WS, WS_V, 2 * MB)
        e("s_sub_u32 s%d, s%d, 32" % (s_t, s_T))
        e("s_lshl_b32 s%d, s%d, 17" % (s_obase, s_t))
        e("s_lshl_b32 s%d, s%d, 11" % (s_t, s_rb))
        e("s_add_u32 s%d, s%d, s%d" % (s_obase, s_obase, s_t))
        e("v_bfe_u32 v7, v1, 4, 1")
        e("v_lshlrev_b32 v7, 16, v7")
        e("v_lshl_add_u32 v7, v5, 8, v7")
        e("v_and_b32 v6, 15, v1")
        e("v_lshl_add_u32 v7, v6, 4, v7")
        main(False)
        e("v_lshlrev_b32 v30, 5, v5")
        e("v_add_u32 v30, %d, v30" % STL)
        AB = 64
        for rt in range(2):
            for g in range(4):
                for h2 in range(2):
                    e("ds_read_b128 %s, v30 offset:%d" % (vr(AB + 32 * rt + 8 * g + 4 * h2, 4), (rt * 32 + 8 * g) * 8 + 16 * h2))
        e("s_waitcnt lgkmcnt(0)")
        k.vwait("cs")
        for rt in range(2):
            a = ACC + 16 * rt
            for r in range(16):
                ab = AB + 32 * rt + 2 * r
                e("v_mul_f32 %s, %s, %s" % (vr(a + r), vr(a + r), vr(ab)))
                e("v_fma_f32 %s, %s, v8, %s" % (vr(a + r), vr(ab + 1), vr(a + r)))
            for half in range(2):
                t0 = 12 + 4 * half
                for j in range(4):
                    r0 = a + 8 * half + 2 * j
                    e("v_cvt_pk_bf16_f32 v%d, %s, %s" % (t0 + j, vr(r0), vr(r0 + 1)))
                e("s_add_u32 s%d, s%d, %d" % (s_t, s_obase, (rt * 2 + half) * 512))
                e("buffer_store_dwordx4 v[%d:%d], v7, %s, s%d offen" % (t0, t0 + 3, sr(SO, 4), s_t))
                e("s_nop 1")
    else:
        load_cs_T()
        k.srd(SB, P_B1, 0, F * 2)
        k.srd(SO, P_WS, WS_H, S * F * 2)
        e("s_lshl_b32 s%d, s%d, 1" % (s_scale, s_nb))
        e("v_lshlrev_b32 v6, 3, v5")
        BI = BIR = 88
        for g in range(4):
            k.vmem("buffer_load_dwordx2 %s, v6, %s, s%d offen offset:%d" % (vr(BI + 2 * g, 2), sr(SB, 4), s_scale, 16 * g), "cs")
        e("s_mul_i32 s%d, s%d, %d" % (s_obase, s_rb, 2 * 112 * 1024))
        e("s_lshl_b32 s%d, s%d, 6" % (s_t, s_nb))
        e("s_add_u32 s%d, s%d, s%d" % (s_obase, s_obase, s_t))
        main(True)
        t_ab(False)
        k.vwait("cs")
        BF = 96
        c1 = -2.0 * 0.7978845608028654 * 1.4426950408889634
        e("v_mov_b32 v120, %s" % hx(f32bits(c1 * 0.044715)))
        e("v_mov_b32 v121, %s" % hx(f32bits(c1 * 0.044715)))
        e("v_mov_b32 v122, %s" % hx(f32bits(c1)))
        e("v_mov_b32 v123, %s" % hx(f32bits(c1)))
        e("v_mov_b32 v124, 1.0")
        e("v_mov_b32 v125, 1.0")
        for q in range(4):
            for h2 in range(2):
                e("v_lshlrev_b32 %s, 16, %s" % (vr(BF + 4 * q + 2 * h2), vr(BIR + 2 * q + h2)))
                e("v_and_b32 %s, 0xffff0000, %s" % (vr(BF + 4 * q + 2 * h2 + 1), vr(BIR + 2 * q + h2)))
        for rt in range(2):
            for g in range(4):
                r0 = ACC + 16 * rt + 4 * g
                bq = BF + 4 * g
                ln_T(r0, rt, CSR + 4 * g)
                for p in range(2):
                    e("v_pk_add_f32 %s, %s, %s" % (vr(r0 + 2 * p, 2), vr(r0 + 2 * p, 2), vr(bq + 2 * p, 2)))
                out = []
                for p in range(2):
                    round_pair(out, r0 + 2 * p, r0 + 2 * p + 1, 72 + p)
                for ins in out:
                    e(ins)
                T = 76
                for p in range(2):
                    e("v_pk_mul_f32 %s, %s, %s" % (vr(T + 2 * p, 2), vr(r0 + 2 * p, 2), vr(r0 + 2 * p, 2)))
                for p in range(2):
                    e("v_pk_fma_f32 %s, %s, v[120:121], v[122:123]" % (vr(T + 2 * p, 2), vr(T + 2 * p, 2)))
                for p in range(2):
                    e("v_pk_mul_f32 %s, %s, %s" % (vr(T + 2 * p, 2), vr(T + 2 * p, 2), vr(r0 + 2 * p, 2)))
                for j in range(4):
                    e("v_exp_f32 v%d, v%d" % (T + j, T + j))
                e("s_nop 0")
                for p in range(2):
                    e("v_pk_add_f32 %s, %s, v[124:125]" % (vr(T + 2 * p, 2), vr(T + 2 * p, 2)))
                for j in range(4):
                    e("v_rcp_f32 v%d, v%d" % (T + j, T + j))
                e("s_nop 0")
                for p in range(2):
                    e("v_pk_mul_f32 %s, %s, %s" % (vr(r0 + 2 * p, 2), vr(r0 + 2 * p, 2), vr(T + 2 * p, 2)))
                t0 = 80 + 2 * (g & 1)
                e("v_cvt_pk_bf16_f32 v%d, %s, %s" % (t0, vr(r0), vr(r0 + 1)))
                e("v_cvt_pk_bf16_f32 v%d, %s, %s" % (t0 + 1, vr(r0 + 2), vr(r0 + 3)))
                e("s_add_u32 s%d, s%d, %d" % (s_t, s_obase, rt * 112 * 1024 + (g >> 1) * 1024 + (g & 1) * 512))
                e("buffer_store_dwordx2 v[%d:%d], v7, %s, s%d offen" % (t0, t0 + 1, sr(SO, 4), s_t))
    k.end()
    return k, NTOT, 512, 65536 + 4096


def qkv_first(name, extra):
    N = 3 * D
    NCB = N // 256
    NWG = 32 * NCB
    NTOT = NWG + seg_wgs(extra)
    WST = N * 2
    k = K(name, 128)
    k.prologue(NTOT)
    e = k.e
    SX, SW, SO = 28, 32, 36
    s_rb, s_cb, s_w, s_t, s_wbase, s_t2, s_scale, s_obase, s_T, s_ring = 48, 49, 50, 51, 52, 54, 55, 56, 58, 59
    RING, STP, STL, CST = 65536, 131072, 131072 + 8192, 131072 + 8192 + 512
    magic = (1 << 32) // (8 * NCB) + 1
    e("s_and_b32 s%d, s2, 7" % s_t)
    e("s_mul_i32 s%d, s%d, %d" % (s_t, s_t, 4 * NCB))
    e("s_lshr_b32 s%d, s2, 3" % s_t2)
    e("s_add_u32 s%d, s%d, s%d" % (s_t2, s_t2, s_t))
    e("s_mov_b32 s%d, %s" % (s_t, hx(magic)))
    e("s_mul_hi_u32 s%d, s%d, s%d" % (s_rb, s_t2, s_t))
    e("s_mul_i32 s%d, s%d, %d" % (s_t, s_rb, 8 * NCB))
    e("s_sub_u32 s%d, s%d, s%d" % (s_t2, s_t2, s_t))
    e("s_lshr_b32 s%d, s%d, 3" % (s_cb, s_t2))
    e("s_and_b32 s%d, s%d, 7" % (s_t2, s_t2))
    e("s_lshl_b32 s%d, s%d, 3" % (s_rb, s_rb))
    e("s_add_u32 s%d, s%d, s%d" % (s_rb, s_rb, s_t2))
    e("v_lshrrev_b32 v2, 6, v0")
    e("v_and_b32 v1, 63, v0")
    e("v_lshrrev_b32 v5, 5, v1")
    e("v_readfirstlane_b32 s%d, v2" % s_w)
    e("v_lshlrev_b32 v3, 4, v1")
    e("v_and_b32 v4, 31, v1")
    e("s_waitcnt lgkmcnt(0)")
    lmain = k.newlabel("main")
    e("s_cmp_lt_u32 s2, %d" % NWG)
    e("s_cbranch_scc1 %s" % (lmain if not EXP.get("nomain") else "L_%s_end" % name))
    if EXP.get("noextra"):
        e("s_endpgm")
    emit_wsegs(k, extra, NWG, s_w)
    k.label(lmain)
    k.srd(SX, P_AX, 0, S * D * 2)
    k.srd(SW, P_WQKV, 0, D * N * 2)
    e("v_lshlrev_b32 v6, 10, v4")
    e("v_lshl_add_u32 v6, v5, 4, v6")
    e("s_lshl_b32 s%d, s%d, 16" % (s_t, s_rb))
    e("s_lshr_b32 s%d, s%d, 2" % (s_t2, s_w))
    e("s_lshl_b32 s%d, s%d, 15" % (s_t2, s_t2))
    e("s_add_u32 s%d, s%d, s%d" % (s_t, s_t, s_t2))
    e("s_and_b32 s%d, s%d, 3" % (s_t2, s_w))
    e("s_lshl_b32 s%d, s%d, 8" % (s_t2, s_t2))
    e("s_add_u32 s%d, s%d, s%d" % (s_t, s_t, s_t2))
    e("s_lshl_b32 s%d, s%d, 13" % (s_t2, s_w))
    for i in range(8):
        e("s_add_u32 m0, s%d, %d" % (s_t2, i * 1024))
        e("s_add_u32 s%d, s%d, %d" % (s_t + 9, s_t, i * 32))
        k.vmem("buffer_load_dwordx4 v6, %s, s%d offen lds" % (sr(SX, 4), s_t + 9), "x")
    e("s_lshl_b32 s%d, s%d, 3" % (s_T, s_cb))
    e("s_add_u32 s%d, s%d, s%d" % (s_T, s_T, s_w))
    e("s_lshl_b32 s%d, s%d, 6" % (s_wbase, s_T))
    e("s_lshl_b32 s%d, s%d, 13" % (s_ring, s_w))
    e("s_add_u32 s%d, s%d, %d" % (s_ring, s_ring, RING))
    e("v_lshrrev_b32 v7, 2, v1")
    e("v_mul_u32_u24 v7, %d, v7" % WST)
    e("v_and_b32 v8, 3, v1")
    e("v_lshl_add_u32 v7, v8, 4, v7")
    e("v_lshrrev_b32 v8, 4, v1")
    e("v_and_b32 v9, 15, v1")
    e("v_lshrrev_b32 v10, 2, v9")
    e("v_and_b32 v9, 3, v9")
    e("v_lshrrev_b32 v11, 1, v8")
    e("v_lshl_add_u32 v11, v11, 3, v10")
    e("v_lshlrev_b32 v11, 6, v11")
    e("v_and_b32 v8, 1, v8")
    e("v_lshlrev_b32 v8, 5, v8")
    e("v_lshl_add_u32 v8, v9, 3, v8")
    e("v_add3_u32 v8, v8, v11, s%d" % s_ring)

    def wdma(ks):
        e("s_add_u32 m0, s%d, %d" % (s_ring, (ks & 7) * 1024))
        e("s_add_u32 s%d, s%d, %d" % (s_t + 9, s_wbase, ks * 16 * WST))
        k.vmem("buffer_load_dwordx4 v7, %s, s%d offen lds" % (sr(SW, 4), s_t + 9), ("w", ks))

    LA = 6
    for ks in range(LA):
        wdma(ks)
    ACC, FRG, WF = 32, 96, 16
    for r in range(32):
        e("v_mov_b32 v%d, 0" % (ACC + r))
    for r in range(24, 29):
        e("v_mov_b32 v%d, 0" % r)
    e("v_mov_b32 v29, 0x3f803f80")

    def xreads(ks):
        b = FRG + 8 * (ks & 3)
        for rt in range(2):
            e("ds_read_b128 %s, v3 offset:%d" % (vr(b + 4 * rt, 4), rt * 32768 + ks * 1024))

    def trreads(ks):
        d = WF + 4 * (ks & 1)
        e("ds_read_b64_tr_b16 %s, v8 offset:%d" % (vr(d, 2), (ks & 7) * 1024))
        e("ds_read_b64_tr_b16 %s, v8 offset:%d" % (vr(d + 2, 2), (ks & 7) * 1024 + 256))

    def main(tr):
        k.vwait("x")
        e("s_barrier")
        xreads(0)
        xreads(1)
        k.vwait(("w", 0))
        trreads(0)
        for ks in range(32):
            if ks + LA < 32:
                wdma(ks + LA)
            if ks + 2 < 32:
                xreads(ks + 2)
            if ks + 1 < 32:
                k.vwait(("w", ks + 1))
                trreads(ks + 1)
            nout = (2 if ks + 2 < 32 else 0) + (2 if ks + 1 < 32 else 0)
            e("s_waitcnt lgkmcnt(%d)" % nout)
            b = FRG + 8 * (ks & 3)
            wf = vr(WF + 4 * (ks & 1), 4)
            for rt in range(2):
                a = ACC + 16 * rt
                xf = vr(b + 4 * rt, 4)
                if tr:
                    e("v_mfma_f32_32x32x16_bf16 %s, %s, %s, %s" % (vr(a, 16), wf, xf, vr(a, 16)))
                else:
                    e("v_mfma_f32_32x32x16_bf16 %s, %s, %s, %s" % (vr(a, 16), xf, wf, vr(a, 16)))
            for j in range(4):
                e("v_dot2_f32_bf16 v28, v%d, v29, v28" % (WF + 4 * (ks & 1) + j))
            ls = k.newlabel("st")
            e("s_cmp_lg_u32 s%d, %d" % (s_w, ks & 7))
            e("s_cbranch_scc1 %s" % ls)
            for rt in range(2):
                for j in range(4):
                    x = b + 4 * rt + j
                    e("v_dot2_f32_bf16 v%d, v%d, v29, v%d" % (24 + 2 * rt, x, 24 + 2 * rt))
                    e("v_dot2_f32_bf16 v%d, v%d, v%d, v%d" % (25 + 2 * rt, x, x, 25 + 2 * rt))
            k.label(ls)
        e("s_nop 3")
        e("v_lshlrev_b32 v30, 4, v4")
        e("v_lshl_add_u32 v30, v5, 3, v30")
        e("s_lshl_b32 s%d, s%d, 10" % (s_t, s_w))
        e("s_add_u32 s%d, s%d, %d" % (s_t, s_t, STP))
        e("v_add_u32 v30, s%d, v30" % s_t)
        e("ds_write_b64 v30, v[24:25]")
        e("ds_write_b64 v30, v[26:27] offset:512")
        e("v_mov_b32 v31, v28")
        e("s_nop 1")
        e("v_permlane32_swap_b32 v28, v31")
        e("s_nop 1")
        e("v_add_f32 v28, v28, v31")
        e("v_lshlrev_b32 v31, 2, v4")
        e("s_lshl_b32 s%d, s%d, 7" % (s_t, s_w))
        e("s_add_u32 s%d, s%d, %d" % (s_t, s_t, CST))
        e("v_add_u32 v31, s%d, v31" % s_t)
        e("ds_write_b32 v31, v28")
        e("s_waitcnt lgkmcnt(0)")
        e("s_barrier")
        e("v_lshrrev_b32 v30, 3, v1")
        e("v_and_b32 v31, 7, v1")
        e("v_lshlrev_b32 v31, 10, v31")
        e("v_lshl_add_u32 v31, v30, 4, v31")
        e("s_lshl_b32 s%d, s%d, 7" % (s_t, s_w))
        e("s_add_u32 s%d, s%d, %d" % (s_t, s_t, STP))
        e("v_add_u32 v31, s%d, v31" % s_t)
        e("ds_read_b128 v[64:67], v31")
        e("s_waitcnt lgkmcnt(0)")
        e("v_pk_add_f32 v[24:25], v[64:65], v[66:67]")
        for ctl in ("quad_perm:[1,0,3,2]", "quad_perm:[2,3,0,1]", "row_half_mirror"):
            e("s_nop 1")
            e("v_add_f32_dpp v24, v24, v24 %s row_mask:0xf bank_mask:0xf" % ctl)
            e("v_add_f32_dpp v25, v25, v25 %s row_mask:0xf bank_mask:0xf" % ctl)
        e("v_mul_f32 v27, %s, v24" % hx(f32bits(1.0 / D)))
        e("v_mul_f32 v26, %s, v25" % hx(f32bits(1.0 / D)))
        e("v_fma_f32 v26, -v27, v27, v26")
        e("v_max_f32 v26, 0, v26")
        e("v_cvt_pk_bf16_f32 v24, v27, v26")
        e("v_lshlrev_b32 v27, 16, v24")
        e("v_and_b32 v26, 0xffff0000, v24")
        e("v_add_f32 v26, %s, v26" % hx(f32bits(1e-5)))
        e("v_cvt_pk_bf16_f32 v24, v26, v26")
        e("v_and_b32 v26, 0xffff0000, v24")
        e("v_sqrt_f32 v26, v26")
        e("s_nop 0")
        e("v_cvt_pk_bf16_f32 v24, v26, v26")
        e("v_and_b32 v26, 0xffff0000, v24")
        e("v_rcp_f32 v26, v26")
        e("s_nop 0")
        e("v_mul_f32 v27, v27, v26")
        e("v_sub_f32 v27, 0, v27")
        e("v_lshlrev_b32 v30, 3, v30")
        e("s_lshl_b32 s%d, s%d, 6" % (s_t, s_w))
        e("s_add_u32 s%d, s%d, %d" % (s_t, s_t, STL))
        e("v_add_u32 v30, s%d, v30" % s_t)
        e("ds_write_b64 v30, v[26:27]")
        e("s_waitcnt lgkmcnt(0)")
        e("s_barrier")

    lv = k.newlabel("vpath")
    e("s_cmp_ge_u32 s%d, 32" % s_T)
    e("s_cbranch_scc1 %s" % lv)
    vm_save = list(k.vm)
    e("s_cmp_lt_u32 s%d, 16" % s_T)
    e("s_cselect_b32 s%d, %s, 1.0" % (s_scale, hx(f32bits(QSCALE))))
    k.srd(SO, P_WS, 0, 6 * MB)
    e("s_lshl_b32 s%d, s%d, 17" % (s_obase, s_T))
    e("s_lshl_b32 s%d, s%d, 11" % (s_t, s_rb))
    e("s_add_u32 s%d, s%d, s%d" % (s_obase, s_obase, s_t))
    main(True)
    CSR = 96
    e("v_lshlrev_b32 v30, 3, v4")
    e("v_add_u32 v30, %d, v30" % STL)
    e("ds_read_b64 v[24:25], v30")
    e("ds_read_b64 v[26:27], v30 offset:256")
    e("v_lshlrev_b32 v31, 4, v5")
    e("s_lshl_b32 s%d, s%d, 7" % (s_t, s_w))
    e("s_add_u32 s%d, s%d, %d" % (s_t, s_t, CST))
    e("v_add_u32 v31, s%d, v31" % s_t)
    for g in range(4):
        e("ds_read_b128 %s, v31 offset:%d" % (vr(CSR + 4 * g, 4), 32 * g))
    e("v_lshlrev_b32 v7, 4, v4")
    e("v_lshl_add_u32 v7, v5, 3, v7")
    e("s_waitcnt lgkmcnt(0)")
    for r in range(24, 28):
        e("v_mul_f32 v%d, s%d, v%d" % (r, s_scale, r))
    for rt, (aa, bb) in enumerate(((24, 25), (26, 27))):
        e("v_mov_b32 v%d, v%d" % (64 + 4 * rt, aa))
        e("v_mov_b32 v%d, v%d" % (65 + 4 * rt, aa))
        e("v_mov_b32 v%d, v%d" % (66 + 4 * rt, bb))
        e("v_mov_b32 v%d, v%d" % (67 + 4 * rt, bb))
    for rt in range(2):
        for g in range(4):
            r0 = ACC + 16 * rt + 4 * g
            for p in range(2):
                e("v_pk_mul_f32 %s, %s, %s" % (vr(r0 + 2 * p, 2), vr(r0 + 2 * p, 2), vr(64 + 4 * rt, 2)))
            for p in range(2):
                e("v_pk_fma_f32 %s, %s, %s, %s" % (vr(r0 + 2 * p, 2), vr(CSR + 4 * g + 2 * p, 2), vr(66 + 4 * rt, 2), vr(r0 + 2 * p, 2)))
            t0 = 72 + 2 * ((rt * 4 + g) & 3)
            e("v_cvt_pk_bf16_f32 v%d, %s, %s" % (t0, vr(r0), vr(r0 + 1)))
            e("v_cvt_pk_bf16_f32 v%d, %s, %s" % (t0 + 1, vr(r0 + 2), vr(r0 + 3)))
            e("s_add_u32 s%d, s%d, %d" % (s_t, s_obase, (g >> 1) * 65536 + rt * 1024 + (g & 1) * 512))
            e("buffer_store_dwordx2 v[%d:%d], v7, %s, s%d offen" % (t0, t0 + 1, sr(SO, 4), s_t))
    e("s_endpgm")
    k.label(lv)
    k.vm = vm_save
    k.srd(SO, P_WS, WS_V, 2 * MB)
    e("s_sub_u32 s%d, s%d, 32" % (s_t, s_T))
    e("s_lshl_b32 s%d, s%d, 17" % (s_obase, s_t))
    e("s_lshl_b32 s%d, s%d, 11" % (s_t, s_rb))
    e("s_add_u32 s%d, s%d, s%d" % (s_obase, s_obase, s_t))
    main(False)
    e("v_bfe_u32 v7, v1, 4, 1")
    e("v_lshlrev_b32 v7, 16, v7")
    e("v_lshl_add_u32 v7, v5, 8, v7")
    e("v_and_b32 v6, 15, v1")
    e("v_lshl_add_u32 v7, v6, 4, v7")
    e("v_lshlrev_b32 v30, 5, v5")
    e("v_add_u32 v30, %d, v30" % STL)
    AB = 64
    for rt in range(2):
        for g in range(4):
            for h2 in range(2):
                e("ds_read_b128 %s, v30 offset:%d" % (vr(AB + 32 * rt + 8 * g + 4 * h2, 4), (rt * 32 + 8 * g) * 8 + 16 * h2))
    e("s_waitcnt lgkmcnt(0)")
    for rt in range(2):
        a = ACC + 16 * rt
        for r in range(16):
            ab = AB + 32 * rt + 2 * r
            e("v_mul_f32 %s, %s, %s" % (vr(a + r), vr(a + r), vr(ab)))
            e("v_fma_f32 %s, %s, v28, %s" % (vr(a + r), vr(ab + 1), vr(a + r)))
        for half in range(2):
            t0 = 12 + 4 * half
            for j in range(4):
                r0 = a + 8 * half + 2 * j
                e("v_cvt_pk_bf16_f32 v%d, %s, %s" % (t0 + j, vr(r0), vr(r0 + 1)))
            e("s_add_u32 s%d, s%d, %d" % (s_t, s_obase, (rt * 2 + half) * 512))
            e("buffer_store_dwordx4 v[%d:%d], v7, %s, s%d offen" % (t0, t0 + 3, sr(SO, 4), s_t))
            e("s_nop 1")
    k.end()
    return k, NTOT, 512, CST + 1024


def nolds(k, t):
    if not EXP.get('nolds'):
        k.e(t)


def attention(name):
    k = K(name, 128)
    k.prologue(256)
    SQ, SK, SV, SO = 28, 32, 36, 40
    s_h, s_qc, s_w, s_t, s_cnt = 48, 49, 50, 51, 52
    ONES = 131072
    k.e("s_and_b32 s%d, s2, 31" % s_h)
    k.e("s_lshr_b32 s%d, s2, 5" % s_qc)
    k.e("v_lshrrev_b32 v2, 6, v0")
    k.e("v_and_b32 v1, 63, v0")
    k.e("s_nop 0")
    k.e("v_readfirstlane_b32 s%d, v2" % s_w)
    k.e("s_waitcnt lgkmcnt(0)")
    k.srd(SQ, P_WS, WS_Q, 2 * MB)
    k.srd(SK, P_WS, WS_K, 2 * MB)
    k.srd(SV, P_WS, WS_V, 2 * MB)
    k.srd(SO, P_WS, WS_O, 2 * MB)
    k.e("v_lshlrev_b32 v3, 4, v1")
    k.e("s_lshl_b32 s%d, s%d, 16" % (s_t, s_h))
    k.e("s_lshl_b32 s%d, s%d, 13" % (s_cnt, s_qc))
    k.e("s_add_u32 s%d, s%d, s%d" % (s_t, s_t, s_cnt))
    k.e("s_lshl_b32 s%d, s%d, 10" % (s_cnt, s_w))
    k.e("s_add_u32 s%d, s%d, s%d" % (s_t, s_t, s_cnt))
    QF = 28
    k.e("buffer_load_dwordx4 %s, v3, %s, s%d offen" % (vr(QF, 4), sr(SQ, 4), s_t))
    k.e("s_lshl_b32 s%d, s%d, 16" % (s_t, s_h))
    k.e("s_lshl_b32 s%d, s%d, 13" % (s_cnt, s_w))
    k.e("s_add_u32 s%d, s%d, s%d" % (s_t, s_t, s_cnt))
    for which, srd_, base in ((0, SK, 0), (1, SV, 65536)):
        for q in range(2):
            k.e("s_add_u32 m0, s%d, %d" % (s_cnt, base + q * 4096))
            k.e("s_add_u32 s%d, s%d, %d" % (s_cnt + 1, s_t, q * 4096))
            for i in range(4):
                k.e("buffer_load_dwordx4 v3, %s, s%d offen offset:%d lds" % (sr(srd_, 4), s_cnt + 1, i * 1024))
    k.e("v_mov_b32 v8, 0x3f803f80")
    k.e("v_mov_b32 v9, 0x3f803f80")
    k.e("v_lshlrev_b32 v12, 3, v0")
    k.e("v_add_u32 v12, %d, v12" % ONES)
    k.e("ds_write_b64 v12, v[8:9]")
    k.e("v_lshrrev_b32 v5, 5, v1")
    k.e("v_and_b32 v13, 15, v1")
    k.e("v_lshlrev_b32 v13, 4, v13")
    k.e("v_lshl_add_u32 v13, v5, 8, v13")
    k.e("v_add_u32 v14, 65536, v13")
    k.e("v_add_u32 v15, %d, v13" % ONES)
    k.e("v_and_b32 v16, 16, v1")
    k.e("v_cmp_eq_u32 vcc, 0, v16")
    k.e("v_mov_b32 v16, 0")
    k.e("v_mov_b32 v19, 4096")
    k.e("s_nop 1")
    k.e("v_cndmask_b32 v17, v16, v19, vcc")
    k.e("v_cndmask_b32 v18, v15, v14, vcc")
    k.e("v_mov_b32 v19, %s" % hx(f32bits(2.0 ** -90)))

    MX = 24
    S4 = [32, 48, 64, 80]
    KF = [96, 100, 104, 108]
    NEG = 32
    SA, SB_ = 48, 64
    OA = 80
    PK = 96
    KF0, KF1 = 104, 108
    VF = 112
    s_fb = 54
    KMX = ONES + 4096
    k.e("s_waitcnt vmcnt(8) lgkmcnt(0)")
    k.e("s_barrier")
    k.e("s_lshl_b32 s%d, s%d, 13" % (s_t, s_w))
    k.e("v_add_u32 v22, s%d, v3" % s_t)
    for j in range(8):
        k.e("ds_read_b128 %s, v22 offset:%d" % (vr(32 + 4 * j, 4), j * 1024))
    k.e("v_mov_b32 v24, 0")
    for j in range(8):
        k.e("s_waitcnt lgkmcnt(%d)" % (7 - j))
        k.e("v_mov_b32 v%d, 0" % (64 + j))
        for i in range(4):
            k.e("v_dot2_f32_bf16 v%d, v%d, v%d, v%d" % (64 + j, 32 + 4 * j + i, 32 + 4 * j + i, 64 + j))
    k.e("v_mov_b32 v25, 0")
    for i in range(4):
        k.e("v_dot2_f32_bf16 v25, v%d, v%d, v25" % (QF + i, QF + i))
    k.e("s_nop 2")
    k.e("v_max3_f32 v24, v64, v65, v66")
    k.e("v_max3_f32 v26, v67, v68, v69")
    k.e("v_max3_f32 v24, v24, v70, v71")
    k.e("v_max_f32 v24, v24, v26")
    for ctl in ("quad_perm:[1,0,3,2]", "quad_perm:[2,3,0,1]", "row_half_mirror", "row_mirror"):
        k.e("s_nop 1")
        k.e("v_max_f32_dpp v24, v24, v24 %s row_mask:0xf bank_mask:0xf" % ctl)
    k.e("v_lshrrev_b32 v26, 4, v1")
    k.e("v_lshlrev_b32 v26, 2, v26")
    k.e("s_lshl_b32 s%d, s%d, 4" % (s_t, s_w))
    k.e("s_add_u32 s%d, s%d, %d" % (s_t, s_t, KMX))
    k.e("v_add_u32 v26, s%d, v26" % s_t)
    k.e("ds_write_b32 v26, v24")
    k.e("v_mov_b32 v26, v25")
    k.e("s_nop 1")
    k.e("v_permlane32_swap_b32 v25, v26")
    k.e("s_nop 1")
    k.e("v_add_f32 v25, v25, v26")
    k.e("s_waitcnt vmcnt(0) lgkmcnt(0)")
    k.e("s_barrier")
    k.e("v_mov_b32 v26, %d" % KMX)
    for j in range(8):
        k.e("ds_read_b128 %s, v26 offset:%d" % (vr(32 + 4 * j, 4), 16 * j))
    k.e("s_waitcnt lgkmcnt(0)")
    for c in range(4):
        k.e("v_max3_f32 v%d, v%d, v%d, v%d" % (64 + c, 32 + c, 36 + c, 40 + c))
        k.e("v_max3_f32 v%d, v%d, v%d, v%d" % (64 + c, 64 + c, 44 + c, 48 + c))
        k.e("v_max3_f32 v%d, v%d, v%d, v%d" % (64 + c, 64 + c, 52 + c, 56 + c))
        k.e("v_max_f32 v%d, v%d, v%d" % (64 + c, 64 + c, 60 + c))
    k.e("v_max_f32 v64, v64, v65")
    k.e("v_max_f32 v66, v66, v67")
    k.e("v_add_f32 v64, v64, v66")
    k.e("v_mul_f32 v24, v25, v64")
    k.e("v_sqrt_f32 v24, v24")
    k.e("s_nop 0")
    k.e("v_fma_f32 v24, v24, %s, %s" % ("1.0", "0.5"))
    k.e("v_mul_f32 v24, %s, v24" % hx(f32bits(-1.001)))
    k.e("s_mov_b32 s%d, 0" % s_fb)
    lp2 = k.newlabel("pass2")
    k.label(lp2)
    for j in range(16):
        k.e("v_mov_b32 v%d, v24" % (NEG + j))
    for j in range(16):
        k.e("v_mov_b32 v%d, 0" % (OA + j))
    k.e("v_mov_b32 v22, v3")
    k.e("v_mov_b32 v23, v18")
    k.e("ds_read_b128 %s, v22" % vr(KF0, 4))
    k.e("ds_read_b128 %s, v22 offset:1024" % vr(KF1, 4))
    for j in range(4):
        k.e("ds_read_b128 %s, v23 offset:%d" % (vr(VF + 4 * j, 4), 512 * j))
    k.e("s_waitcnt lgkmcnt(5)")
    k.e("v_mfma_f32_32x32x16_bf16 %s, %s, %s, %s" % (vr(SA, 16), vr(KF0, 4), vr(QF, 4), vr(NEG, 16)))
    k.e("s_mov_b32 s%d, 0" % s_cnt)
    k.e("s_nop 7")
    k.e("s_nop 3")

    def softmax_pv(Sx, vf0, vf1):
        for j in range(16):
            k.e("v_exp_f32 %s, %s" % (vr(Sx + j), vr(Sx + j)))
            if j % 2 == 1 and j >= 3:
                k.e("v_cvt_pk_bf16_f32 %s, %s, %s" % (vr(PK + (j - 3) // 2), vr(Sx + j - 3), vr(Sx + j - 2)))
        k.e("v_mfma_f32_32x32x16_bf16 %s, %s, %s, %s" % (vr(OA, 16), vr(vf0, 4), vr(PK, 4), vr(OA, 16)))
        k.e("v_cvt_pk_bf16_f32 %s, %s, %s" % (vr(PK + 7), vr(Sx + 14), vr(Sx + 15)))
        k.e("s_nop 1")
        k.e("v_mfma_f32_32x32x16_bf16 %s, %s, %s, %s" % (vr(OA, 16), vr(vf1, 4), vr(PK + 4, 4), vr(OA, 16)))

    l2 = k.newlabel("p2")
    k.label(l2)
    for half in range(2):
        ko = half * 2048
        k.e("s_waitcnt lgkmcnt(0)")
        k.e("v_mfma_f32_32x32x16_bf16 %s, %s, %s, %s" % (vr(SB_, 16), vr(KF1, 4), vr(QF, 4), vr(NEG, 16)))
        k.e("ds_read_b128 %s, v22 offset:%d" % (vr(KF0, 4), ko + 2048))
        k.e("ds_read_b128 %s, v22 offset:%d" % (vr(KF1, 4), ko + 3072))
        softmax_pv(SA, VF, VF + 4)
        if half == 1:
            k.e("v_add_u32 v23, v23, v17")
            vn = 0
        else:
            vn = 2048
        k.e("ds_read_b128 %s, v23 offset:%d" % (vr(VF, 4), vn))
        k.e("ds_read_b128 %s, v23 offset:%d" % (vr(VF + 4, 4), vn + 512))
        k.e("s_waitcnt lgkmcnt(2)")
        k.e("v_mfma_f32_32x32x16_bf16 %s, %s, %s, %s" % (vr(SA, 16), vr(KF0, 4), vr(QF, 4), vr(NEG, 16)))
        if half == 1:
            k.e("v_add_u32 v22, 4096, v22")
            k.e("s_add_u32 s%d, s%d, 1" % (s_cnt, s_cnt))
            k.e("s_cmp_lt_u32 s%d, 16" % s_cnt)
        softmax_pv(SB_, VF + 8, VF + 12)
        k.e("ds_read_b128 %s, v23 offset:%d" % (vr(VF + 8, 4), vn + 1024))
        k.e("ds_read_b128 %s, v23 offset:%d" % (vr(VF + 12, 4), vn + 1536))
    k.e("s_cbranch_scc1 %s" % l2)
    k.e("s_waitcnt lgkmcnt(0)")
    k.e("s_nop 15")
    k.e("s_nop 3")
    ldone = k.newlabel("ok")
    k.e("v_cmp_nge_f32 vcc, %s, %s" % (vr(OA + 8), "v16" if False else "v19"))
    k.e("s_cmp_lg_u32 s%d, 0" % s_fb)
    k.e("s_cbranch_scc1 %s" % ldone)
    k.e("s_cbranch_vccz %s" % ldone) if not EXP.get("force_fb") else None
    k.e("s_mov_b32 s%d, 1" % s_fb)
    k.e("v_mov_b32 v22, v3")
    for j in range(4):
        k.e("v_mov_b32 v%d, 0xff800000" % (MX + j))
    for j in range(4):
        k.e("ds_read_b128 %s, v22 offset:%d" % (vr(KF[j], 4), j * 1024))
    k.e("s_waitcnt lgkmcnt(2)")
    k.e("v_mfma_f32_32x32x16_bf16 %s, %s, %s, 0" % (vr(S4[0], 16), vr(KF[0], 4), vr(QF, 4)))
    k.e("v_mfma_f32_32x32x16_bf16 %s, %s, %s, 0" % (vr(S4[1], 16), vr(KF[1], 4), vr(QF, 4)))
    k.e("ds_read_b128 %s, v22 offset:4096" % vr(KF[0], 4))
    k.e("ds_read_b128 %s, v22 offset:5120" % vr(KF[1], 4))
    k.e("s_mov_b32 s%d, 0" % s_cnt)

    def maxes(Sx):
        for j in range(8):
            k.e("v_max3_f32 v%d, v%d, %s, %s" % (MX + (j & 3), MX + (j & 3), vr(Sx + 2 * j), vr(Sx + 2 * j + 1)))

    l1 = k.newlabel("p1")
    k.label(l1)
    k.e("s_waitcnt lgkmcnt(2)")
    k.e("v_mfma_f32_32x32x16_bf16 %s, %s, %s, 0" % (vr(S4[2], 16), vr(KF[2], 4), vr(QF, 4)))
    k.e("v_mfma_f32_32x32x16_bf16 %s, %s, %s, 0" % (vr(S4[3], 16), vr(KF[3], 4), vr(QF, 4)))
    k.e("ds_read_b128 %s, v22 offset:6144" % vr(KF[2], 4))
    k.e("ds_read_b128 %s, v22 offset:7168" % vr(KF[3], 4))
    k.e("s_add_u32 s%d, s%d, 1" % (s_cnt, s_cnt))
    k.e("s_cmp_lt_u32 s%d, 16" % s_cnt)
    k.e("v_add_u32 v22, 4096, v22")
    k.e("s_nop 4")
    maxes(S4[0])
    maxes(S4[1])
    k.e("s_waitcnt lgkmcnt(2)")
    k.e("v_mfma_f32_32x32x16_bf16 %s, %s, %s, 0" % (vr(S4[0], 16), vr(KF[0], 4), vr(QF, 4)))
    k.e("v_mfma_f32_32x32x16_bf16 %s, %s, %s, 0" % (vr(S4[1], 16), vr(KF[1], 4), vr(QF, 4)))
    k.e("ds_read_b128 %s, v22 offset:4096" % vr(KF[0], 4))
    k.e("ds_read_b128 %s, v22 offset:5120" % vr(KF[1], 4))
    maxes(S4[2])
    maxes(S4[3])
    k.e("s_cbranch_scc1 %s" % l1)
    k.e("v_max3_f32 v24, v24, v25, v26")
    k.e("v_max_f32 v24, v24, v27")
    k.e("v_mov_b32 v25, v24")
    k.e("s_nop 1")
    k.e("v_permlane32_swap_b32 v24, v25")
    k.e("s_nop 1")
    k.e("v_max_f32 v24, v24, v25")
    k.e("v_sub_f32 v24, 0, v24")
    k.e("s_waitcnt lgkmcnt(0)")
    k.e("s_nop 7")
    k.e("s_branch %s" % lp2)
    k.label(ldone)
    k.e("v_rcp_f32 v24, %s" % vr(OA + 8))
    k.e("s_nop 0")
    for j in range(8):
        k.e("v_mul_f32 %s, %s, v24" % (vr(OA + j), vr(OA + j)))
    for j in range(4):
        k.e("v_cvt_pk_bf16_f32 %s, %s, %s" % (vr(PK + j), vr(OA + 2 * j), vr(OA + 2 * j + 1)))
    k.e("v_and_b32 v24, 31, v1")
    k.e("v_lshlrev_b32 v24, 4, v24")
    k.e("v_lshl_add_u32 v24, v5, 3, v24")
    k.e("s_lshl_b32 s%d, s%d, 18" % (s_t, s_qc))
    k.e("s_lshl_b32 s%d, s%d, 15" % (s_cnt, s_w))
    k.e("s_add_u32 s%d, s%d, s%d" % (s_t, s_t, s_cnt))
    k.e("s_lshl_b32 s%d, s%d, 10" % (s_cnt, s_h))
    k.e("s_add_u32 s%d, s%d, s%d" % (s_t, s_t, s_cnt))
    k.e("buffer_store_dwordx2 %s, v24, %s, s%d offen" % (vr(PK, 2), sr(SO, 4), s_t))
    k.e("buffer_store_dwordx2 %s, v24, %s, s%d offen offset:512" % (vr(PK + 2, 2), sr(SO, 4), s_t))
    k.e("s_waitcnt lgkmcnt(0)")
    k.end()
    return k, 256, 512, 131072 + 8192 + 256


def gemm64(name, aoff, Kdim, woff, bias, roff, dst, stoff, res_rm=False):
    KS = Kdim // 16
    KSW = KS // 4
    WIN = min(KSW, 14)
    final = dst[0] == 'arg'
    k = K(name, 128, WIN * 16)
    k.prologue(256)
    SA_, SW, SR, SO, SB, SS = 28, 32, 36, 40, 44, 56
    s_rb, s_cb, s_w, s_t, s_t2, s_abase, s_wbase, s_xo = 48, 49, 50, 51, 52, 53, 54, 55
    k.e("s_and_b32 s%d, s2, 7" % s_t)
    k.e("s_lshl_b32 s%d, s%d, 2" % (s_rb, s_t))
    k.e("s_lshr_b32 s%d, s2, 6" % s_t)
    k.e("s_add_u32 s%d, s%d, s%d" % (s_rb, s_rb, s_t))
    k.e("s_lshr_b32 s%d, s2, 3" % s_cb)
    k.e("s_and_b32 s%d, s%d, 7" % (s_cb, s_cb))
    k.e("v_lshrrev_b32 v2, 6, v0")
    k.e("v_and_b32 v1, 63, v0")
    k.e("v_lshlrev_b32 v3, 4, v1")
    k.e("v_readfirstlane_b32 s%d, v2" % s_w)
    k.e("s_waitcnt lgkmcnt(0)")
    k.srd(SA_, P_WS, aoff, S * Kdim * 2)
    k.srd(SW, P_WS, woff, Kdim * D * 2)
    if res_rm:
        k.srd(SR, P_AX, 0, S * D * 2)
    else:
        k.srd(SR, P_WS, roff, S * D * 2)
    src_srd(k, SO, dst, S * D * 2)
    if bias is not None:
        k.srd(SB, bias, 0, D * 2)
    if not final:
        k.srd(SS, P_WS, stoff, S * 256)
    k.e("s_mul_i32 s%d, s%d, %d" % (s_t, s_w, KSW * 1024))
    k.e("s_mul_i32 s%d, s%d, %d" % (s_abase, s_rb, 2 * KS * 1024))
    k.e("s_add_u32 s%d, s%d, s%d" % (s_abase, s_abase, s_t))
    k.e("s_mul_i32 s%d, s%d, %d" % (s_wbase, s_cb, 2 * KS * 1024))
    k.e("s_add_u32 s%d, s%d, s%d" % (s_wbase, s_wbase, s_t))
    k.e("v_lshrrev_b32 v15, 5, v1")
    k.e("v_and_b32 v14, 31, v1")
    k.e("v_lshlrev_b32 v16, 4, v14")
    k.e("v_lshl_add_u32 v16, v15, 3, v16")
    k.e("s_lshr_b32 s%d, s%d, 1" % (s_t, s_w))
    k.e("s_lshl_b32 s%d, s%d, 1" % (s_t2, s_rb))
    k.e("s_add_u32 s%d, s%d, s%d" % (s_t, s_t, s_t2))
    k.e("s_lshl_b32 s%d, s%d, 15" % (s_xo, s_t))
    k.e("s_lshl_b32 s%d, s%d, 12" % (s_t2, s_cb))
    k.e("s_add_u32 s%d, s%d, s%d" % (s_xo, s_xo, s_t2))
    k.e("s_and_b32 s%d, s%d, 1" % (s_t2, s_w))
    k.e("s_lshl_b32 s%d, s%d, 11" % (s_t2, s_t2))
    k.e("s_add_u32 s%d, s%d, s%d" % (s_xo, s_xo, s_t2))

    def loads(s):
        slot = (s % WIN) * 16
        for t in range(2):
            k.e("s_add_u32 s%d, s%d, %d" % (s_t, s_abase, (t * KS + s) * 1024))
            k.vmem("buffer_load_dwordx4 %s, v3, %s, s%d offen" % (ar(slot + 4 * t, 4), sr(SA_, 4), s_t), ("m", s))
        for t in range(2):
            k.e("s_add_u32 s%d, s%d, %d" % (s_t, s_wbase, (t * KS + s) * 1024))
            k.vmem("buffer_load_dwordx4 %s, v3, %s, s%d offen" % (ar(slot + 8 + 4 * t, 4), sr(SW, 4), s_t), ("m", s))

    NW0 = min(WIN, EXP.get("nw0", 6))
    for s in range(NW0):
        loads(s)
    RX = 40
    if res_rm:
        k.e("s_lshr_b32 s%d, s%d, 1" % (s_t, s_w))
        k.e("s_lshl_b32 s%d, s%d, 5" % (s_t, s_t))
        k.e("s_lshl_b32 s%d, s%d, 6" % (s_t2, s_rb))
        k.e("s_add_u32 s%d, s%d, s%d" % (s_t, s_t, s_t2))
        k.e("v_add_u32 v19, s%d, v14" % s_t)
        k.e("v_lshlrev_b32 v19, 10, v19")
        k.e("v_lshl_add_u32 v19, v15, 3, v19")
        k.e("s_lshl_b32 s%d, s%d, 7" % (s_t, s_cb))
        k.e("s_and_b32 s%d, s%d, 1" % (s_t2, s_w))
        k.e("s_lshl_b32 s%d, s%d, 6" % (s_t2, s_t2))
        k.e("s_add_u32 s%d, s%d, s%d" % (s_t, s_t, s_t2))
        for g in range(4):
            k.vmem("buffer_load_dwordx2 %s, v19, %s, s%d offen offset:%d" % (vr(RX + 2 * g, 2), sr(SR, 4), s_t, 16 * g), "res")
    else:
        for g in range(4):
            k.vmem("buffer_load_dwordx2 %s, v16, %s, s%d offen offset:%d" % (vr(RX + 2 * g, 2), sr(SR, 4), s_xo, 512 * g), "res")
    if bias is not None:
        k.e("s_lshl_b32 s%d, s%d, 7" % (s_t, s_cb))
        k.e("s_and_b32 s%d, s%d, 1" % (s_t2, s_w))
        k.e("s_lshl_b32 s%d, s%d, 6" % (s_t2, s_t2))
        k.e("s_add_u32 s%d, s%d, s%d" % (s_t, s_t, s_t2))
        k.e("v_lshlrev_b32 v17, 3, v15")
        for g in range(4):
            k.vmem("buffer_load_dwordx2 %s, v17, %s, s%d offen offset:%d" % (vr(48 + 2 * g, 2), sr(SB, 4), s_t, 16 * g), "res")
    ACC = 64
    for r in range(64):
        k.e("v_mov_b32 v%d, 0" % (ACC + r))
    issued = NW0
    for s in range(KSW):
        k.vwait(("m", s))
        slot = (s % WIN) * 16
        for rt in range(2):
            for ct in range(2):
                a = ACC + 16 * (2 * rt + ct)
                k.e("v_mfma_f32_32x32x16_bf16 %s, %s, %s, %s" % (vr(a, 16), ar(slot + 8 + 4 * ct, 4), ar(slot + 4 * rt, 4), vr(a, 16)))
        nn = 0
        while issued < KSW and issued - WIN <= s and issued <= s + EXP.get("nw0", 6) + 0 and nn < 2:
            loads(issued)
            issued += 1
            nn += 1
    k.e("s_lshl_b32 s%d, s%d, 12" % (s_t2, s_w))
    k.e("v_add_u32 v4, s%d, v3" % s_t2)
    k.e("s_lshl_b32 s%d, s%d, 14" % (s_t2, s_w))
    k.e("v_add_u32 v6, s%d, v3" % s_t2)
    k.e("s_nop 15")
    for t in range(4):
        for q in range(4):
            k.e("ds_write_b128 v4, %s offset:%d" % (vr(ACC + 16 * t + 4 * q, 4), t * 16384 + q * 1024))
    k.e("s_waitcnt lgkmcnt(0)")
    k.e("s_barrier")
    for w2 in range(4):
        for q in range(4):
            k.e("ds_read_b128 %s, v6 offset:%d" % (vr(ACC + 16 * w2 + 4 * q, 4), w2 * 4096 + q * 1024))
    if final:
        k.e("s_lshr_b32 s%d, s%d, 1" % (s_t, s_w))
        k.e("s_lshl_b32 s%d, s%d, 5" % (s_t, s_t))
        k.e("s_lshl_b32 s%d, s%d, 6" % (s_t2, s_rb))
        k.e("s_add_u32 s%d, s%d, s%d" % (s_t, s_t, s_t2))
        k.e("v_add_u32 v18, s%d, v14" % s_t)
        k.e("v_lshlrev_b32 v18, 10, v18")
        k.e("v_lshl_add_u32 v18, v15, 3, v18")
        k.e("s_lshl_b32 s%d, s%d, 7" % (s_xo, s_cb))
        k.e("s_and_b32 s%d, s%d, 1" % (s_t2, s_w))
        k.e("s_lshl_b32 s%d, s%d, 6" % (s_t2, s_t2))
        k.e("s_add_u32 s%d, s%d, s%d" % (s_xo, s_xo, s_t2))
    else:
        k.e("v_mov_b32 v18, v16")
        k.e("v_mov_b32 v7, 0x3f803f80")
        k.e("v_mov_b32 v8, 0")
        k.e("v_mov_b32 v9, 0")
    k.e("s_waitcnt vmcnt(0) lgkmcnt(0)")
    for r in range(0, 16, 2):
        k.e("v_pk_add_f32 %s, %s, %s" % (vr(ACC + r, 2), vr(ACC + r, 2), vr(ACC + 16 + r, 2)))
        k.e("v_pk_add_f32 %s, %s, %s" % (vr(ACC + 32 + r, 2), vr(ACC + 32 + r, 2), vr(ACC + 48 + r, 2)))
    for r in range(0, 16, 2):
        k.e("v_pk_add_f32 %s, %s, %s" % (vr(ACC + r, 2), vr(ACC + r, 2), vr(ACC + 32 + r, 2)))
    for g in range(4):
        r0 = ACC + 4 * g
        out = []
        for p in range(2):
            round_pair(out, r0 + 2 * p, r0 + 2 * p + 1, 56 + p)
        if bias is not None:
            for p in range(2):
                out.append("v_lshlrev_b32 v58, 16, %s" % vr(48 + 2 * g + p))
                out.append("v_and_b32 v59, 0xffff0000, %s" % vr(48 + 2 * g + p))
                out.append("v_pk_add_f32 %s, %s, v[58:59]" % (vr(r0 + 2 * p, 2), vr(r0 + 2 * p, 2)))
            for p in range(2):
                round_pair(out, r0 + 2 * p, r0 + 2 * p + 1, 56 + p)
        for p in range(2):
            out.append("v_lshlrev_b32 v58, 16, %s" % vr(RX + 2 * g + p))
            out.append("v_and_b32 v59, 0xffff0000, %s" % vr(RX + 2 * g + p))
            out.append("v_pk_add_f32 %s, %s, v[58:59]" % (vr(r0 + 2 * p, 2), vr(r0 + 2 * p, 2)))
        for ins in out:
            k.e(ins)
        o = 20 + 2 * g
        k.e("v_cvt_pk_bf16_f32 v%d, %s, %s" % (o, vr(r0), vr(r0 + 1)))
        k.e("v_cvt_pk_bf16_f32 v%d, %s, %s" % (o + 1, vr(r0 + 2), vr(r0 + 3)))
        k.e("buffer_store_dwordx2 v[%d:%d], v18, %s, s%d offen offset:%d" % (o, o + 1, sr(SO, 4), s_xo, (16 if final else 512) * g))
        if not final:
            for p in range(2):
                k.e("v_dot2_f32_bf16 v8, v%d, v7, v8" % (o + p))
                k.e("v_dot2_f32_bf16 v9, v%d, v%d, v9" % (o + p, o + p))
    if not final:
        k.e("v_mov_b32 v10, v16")
        k.e("s_lshr_b32 s%d, s%d, 1" % (s_t, s_w))
        k.e("s_lshl_b32 s%d, s%d, 1" % (s_t2, s_rb))
        k.e("s_add_u32 s%d, s%d, s%d" % (s_t, s_t, s_t2))
        k.e("s_lshl_b32 s%d, s%d, 9" % (s_t, s_t))
        k.e("s_lshl_b32 s%d, s%d, 16" % (s_t2, s_cb))
        k.e("s_add_u32 s%d, s%d, s%d" % (s_t, s_t, s_t2))
        k.e("s_and_b32 s%d, s%d, 1" % (s_t2, s_w))
        k.e("s_lshl_b32 s%d, s%d, 15" % (s_t2, s_t2))
        k.e("s_add_u32 s%d, s%d, s%d" % (s_t, s_t, s_t2))
        k.e("buffer_store_dwordx2 v[8:9], v10, %s, s%d offen" % (sr(SS, 4), s_t))
    k.end()
    return k, 256, 256, 65536


def build():
    ks = []
    LG = lngemm8
    ks.append(qkv_first("qkv1_kernel", SEG_ALL))
    ks.append(attention("attn_kernel"))
    ks.append(gemm64("wo1_kernel", WS_O, D, WS_WO, None, WS_X0, ('ws', WS_X1), WS_ST1, True))
    ks.append(LG("ffn1a_kernel", WS_X1, WS_ST1, WS_W1, WS_CS1, F, 'ffn1'))
    ks.append(gemm64("ffn2a_kernel", WS_H, F, WS_W2, P_B2, WS_X1, ('ws', WS_X2), WS_ST2))
    ks.append(LG("qkv2_kernel", WS_X2, WS_ST2, WS_WQ, WS_CSQ, 3 * D, 'qkv'))
    ks.append(gemm64("wo2_kernel", WS_O, D, WS_WO, None, WS_X2, ('ws', WS_X3), WS_ST3))
    ks.append(LG("ffn1b_kernel", WS_X3, WS_ST3, WS_W1, WS_CS1, F, 'ffn1'))
    ks.append(gemm64("ffn2b_kernel", WS_H, F, WS_W2, P_B2, WS_X3, ('arg', P_OUT), None))
    byname = {k.name: (k, nwg, blk, lds) for k, nwg, blk, lds in ks}
    order = ["qkv1_kernel", "attn_kernel", "wo1_kernel", "ffn1a_kernel", "ffn2a_kernel",
             "qkv2_kernel", "attn_kernel", "wo2_kernel", "ffn1b_kernel", "ffn2b_kernel"]
    out = []
    for n in order:
        k, nwg, blk, lds = byname[n]
        out.append("; @launch kernel=%s grid=(%d,1,1) block=(%d,1,1) lds=%d" % (n, nwg, blk, lds))
    out.append('.amdgcn_target "amdgcn-amd-amdhsa--gfx950"')
    out.append(".text")
    for k, _, _, _ in ks:
        out += k.lines
    out.append('.section .rodata,"a"')
    for k, _, _, _ in ks:
        out.append(".p2align 6")
        out.append(k.desc())
    return "\n".join(out) + "\n"


if __name__ == "__main__":
    path = sys.argv[1] if len(sys.argv) > 1 else "cdna_kernels/%s.s" % NAME
    open(path, "w").write(build())
    print("wrote", path)
```

```python
import struct, sys, os, json

NAME = "interleave_layers__softmax_full_mha__dense_activation_gelu__prompt"
S, D, H, DH, F = 2048, 512, 32, 16, 1792
EXP = json.loads(os.environ.get("EXP", "{}"))

MB = 1 << 20
WS_Q, WS_K, WS_V, WS_O, WS_X1, WS_H, WS_X2, WS_X3 = 0, 2 * MB, 4 * MB, 6 * MB, 8 * MB, 10 * MB, 18 * MB, 20 * MB
WS_WQ, WS_WO, WS_W1, WS_W2 = 22 * MB, 24 * MB, 25 * MB, 27 * MB
WS_X0 = 30 * MB
WS_ST0, WS_ST1, WS_ST2, WS_ST3 = 32 * MB, 33 * MB, 34 * MB, 35 * MB
WS_CSQ, WS_CS1 = 36 * MB, 36 * MB + 65536

P_AX, P_WQKV, P_WO, P_BX, P_W1, P_B1, P_W2, P_B2, P_OUT, P_DBG, P_WS = 4, 6, 8, 10, 12, 14, 16, 18, 20, 22, 24
QSCALE = 0.25 * 1.4426950408889634


def f32bits(x):
    return struct.unpack("<I", struct.pack("<f", x))[0]


def hx(x):
    return "0x%08x" % (x & 0xFFFFFFFF)


class K:
    def __init__(self, name, nvgpr, nagpr=0, nsgpr=96):
        self.name = name
        self.lines = []
        self.nvgpr = nvgpr
        self.nagpr = nagpr
        self.nsgpr = nsgpr
        self.lab = 0
        self.vm = []

    def e(self, s):
        self.lines.append("    " + s)

    def label(self, l):
        self.lines.append(l + ":")

    def newlabel(self, stem):
        self.lab += 1
        return "L_%s_%s_%d" % (self.name, stem, self.lab)

    def vmem(self, text, tag=None):
        self.e(text)
        self.vm.append(tag)

    def vwait(self, tag, extra=""):
        idx = max(i for i, t in enumerate(self.vm) if t == tag)
        n = len(self.vm) - 1 - idx
        self.e("s_waitcnt vmcnt(%d)%s" % (min(n, 63), extra))

    def stamp(self):
        if EXP.get("stamp"):
            self.nst = getattr(self, "nst", 0)
            self.e("s_memtime s[%d:%d]" % (70 + 2 * self.nst, 71 + 2 * self.nst))
            self.nst += 1

    def stamp_out(self, s_w):
        if not EXP.get("stamp"):
            return
        sv = self.nst
        self.e("s_waitcnt vmcnt(0)")
        self.stamp()
        self.e("s_waitcnt lgkmcnt(0)")
        self.srd(40, P_WS, 40 * MB, 1 << 20)
        for i in range(self.nst):
            self.e("v_mov_b32 v%d, s%d" % (8 + i, 70 + 2 * i))
        self.e("s_lshl_b32 s51, s2, 9")
        self.e("s_lshl_b32 s54, s%d, 6" % s_w)
        self.e("s_add_u32 s51, s51, s54")
        self.e("v_mov_b32 v30, 0")
        for q in range(3):
            self.e("buffer_store_dwordx4 v[%d:%d], v30, s[40:43], s51 offen offset:%d" % (8 + 4 * q, 11 + 4 * q, 16 * q))
        self.nst = sv

    def prologue(self, nwg):
        self.lines.append(".globl %s" % self.name)
        self.lines.append(".p2align 8")
        self.lines.append(".type %s,@function" % self.name)
        self.lines.append("%s:" % self.name)
        self.e("s_cmp_ge_u32 s2, %d" % nwg)
        self.e("s_cbranch_scc1 L_%s_end" % self.name)
        self.e("s_load_dwordx16 s[4:19], s[0:1], 0")
        self.e("s_load_dwordx4 s[20:23], s[0:1], 64")
        self.e("s_load_dwordx2 s[24:25], s[0:1], 80")

    def srd(self, dst, ptr, off, size):
        if off:
            self.e("s_add_u32 s%d, s%d, %s" % (dst, ptr, hx(off)))
            self.e("s_addc_u32 s%d, s%d, 0" % (dst + 1, ptr + 1))
            self.e("s_and_b32 s%d, s%d, 0xffff" % (dst + 1, dst + 1))
        else:
            self.e("s_mov_b32 s%d, s%d" % (dst, ptr))
            self.e("s_and_b32 s%d, s%d, 0xffff" % (dst + 1, ptr + 1))
        self.e("s_mov_b32 s%d, %s" % (dst + 2, hx(size)))
        self.e("s_mov_b32 s%d, 0x00020000" % (dst + 3))

    def end(self):
        self.label("L_%s_end" % self.name)
        self.e("s_endpgm")

    def desc(self):
        acc = (self.nvgpr + 3) // 4 * 4
        nfv = acc + self.nagpr if self.nagpr else self.nvgpr
        return "\n".join([
            ".amdhsa_kernel %s" % self.name,
            "  .amdhsa_next_free_vgpr %d" % nfv,
            "  .amdhsa_next_free_sgpr %d" % self.nsgpr,
            "  .amdhsa_accum_offset %d" % acc,
            "  .amdhsa_group_segment_fixed_size 0",
            "  .amdhsa_kernarg_size 88",
            "  .amdhsa_user_sgpr_count 2",
            "  .amdhsa_user_sgpr_kernarg_segment_ptr 1",
            "  .amdhsa_system_sgpr_workgroup_id_x 1",
            ".end_amdhsa_kernel",
        ])


def vr(a, n=1):
    return "v%d" % a if n == 1 else "v[%d:%d]" % (a, a + n - 1)


def ar(a, n=1):
    return "a%d" % a if n == 1 else "a[%d:%d]" % (a, a + n - 1)


def sr(a, n=1):
    return "s%d" % a if n == 1 else "s[%d:%d]" % (a, a + n - 1)


def src_srd(k, dst, src, size):
    if src[0] == 'arg':
        k.srd(dst, src[1], 0, size)
    else:
        k.srd(dst, P_WS, src[1], size)


def round_pair(out, lo, hi, tmp):
    out.append("v_cvt_pk_bf16_f32 %s, %s, %s" % (vr(tmp), vr(lo), vr(hi)))
    out.append("v_lshlrev_b32 %s, 16, %s" % (vr(lo), vr(tmp)))
    out.append("v_and_b32 %s, 0xffff0000, %s" % (vr(hi), vr(tmp)))


SEG_ALL = [(P_WQKV, D, 3 * D, WS_WQ, 1, 8, WS_CSQ), (P_W1, D, F, WS_W1, 1, 8, WS_CS1),
           (P_WO, D, D, WS_WO, 1, 8, None), (P_W2, F, D, WS_W2, 4, 7, None)]


def seg_wgs(segs):
    return sum((n // 64) * ch // 2 for _, kd, n, _, ch, _, _ in segs)


def emit_wsegs(k, segs, NX, s_w8):
    nwgs = [(n // 64) * ch // 2 for _, kd, n, _, ch, _, _ in segs]
    s_w, s_team = 89, 90
    k.e("s_and_b32 s%d, s%d, 3" % (s_w, s_w8))
    k.e("s_lshr_b32 s%d, s%d, 2" % (s_team, s_w8))
    SW, SO, SS = 28, 32, 36
    s_loc, s_st, s_t, s_nt, s_ks, s_t2, s_ch, s_lb = 80, 81, 83, 84, 85, 86, 87, 88
    base = NX
    for idx, (ptr, kd, n, wsoff, ch, kpw, cs) in enumerate(segs):
        lnext = k.newlabel("seg")
        if idx < len(segs) - 1:
            k.e("s_cmp_ge_u32 s2, %d" % (base + nwgs[idx]))
            k.e("s_cbranch_scc1 %s" % lnext)
        KSN = kd // 16
        st = n * 2
        k.e("s_sub_u32 s%d, s2, %d" % (s_loc, base))
        k.e("s_lshl_b32 s%d, s%d, 1" % (s_loc, s_loc))
        k.e("s_add_u32 s%d, s%d, s%d" % (s_loc, s_loc, s_team))
        k.srd(SW, ptr, 0, kd * n * 2)
        k.srd(SO, P_WS, wsoff, kd * n * 2)
        if ch == 1:
            k.e("s_mov_b32 s%d, s%d" % (s_nt, s_loc))
            k.e("s_mul_i32 s%d, s%d, %d" % (s_ks, s_w, kpw))
        else:
            k.e("s_lshr_b32 s%d, s%d, 2" % (s_nt, s_loc))
            k.e("s_and_b32 s%d, s%d, 3" % (s_ch, s_loc))
            k.e("s_lshl_b32 s%d, s%d, 2" % (s_ch, s_ch))
            k.e("s_add_u32 s%d, s%d, s%d" % (s_ch, s_ch, s_w))
            k.e("s_mul_i32 s%d, s%d, %d" % (s_ks, s_ch, kpw))
        k.e("v_lshrrev_b32 v3, 3, v1")
        k.e("v_mul_u32_u24 v3, %d, v3" % st)
        k.e("v_and_b32 v4, 7, v1")
        k.e("v_lshl_add_u32 v3, v4, 4, v3")
        k.e("s_mul_i32 s%d, s%d, %d" % (s_t2, s_ks, 16 * st))
        k.e("s_lshl_b32 s%d, s%d, 7" % (s_t, s_nt))
        k.e("s_add_u32 s%d, s%d, s%d" % (s_t2, s_t2, s_t))
        k.e("s_lshl_b32 s%d, s%d, 14" % (s_lb, s_w8))
        for i in range(2 * kpw):
            k.e("s_add_u32 m0, s%d, %d" % (s_lb, i * 1024))
            k.e("s_nop 0")
            k.e("buffer_load_dwordx4 v3, %s, s%d offen lds" % (sr(SW, 4), s_t2))
            k.e("s_add_u32 s%d, s%d, %d" % (s_t2, s_t2, 8 * st))
        k.e("v_lshrrev_b32 v6, 4, v1")
        k.e("v_and_b32 v7, 15, v1")
        k.e("v_lshrrev_b32 v8, 2, v7")
        k.e("v_and_b32 v9, 3, v7")
        k.e("v_lshrrev_b32 v10, 1, v6")
        k.e("v_lshl_add_u32 v10, v10, 3, v8")
        k.e("v_lshlrev_b32 v10, 7, v10")
        k.e("v_and_b32 v11, 1, v6")
        k.e("v_lshlrev_b32 v11, 5, v11")
        k.e("v_lshl_add_u32 v11, v9, 3, v11")
        k.e("v_add3_u32 v10, v10, v11, s%d" % s_lb)
        k.e("v_lshlrev_b32 v5, 4, v1")
        k.e("s_mul_i32 s%d, s%d, %d" % (s_t, s_nt, 2 * KSN))
        k.e("s_add_u32 s%d, s%d, s%d" % (s_t, s_t, s_ks))
        k.e("s_lshl_b32 s%d, s%d, 10" % (s_t, s_t))
        k.e("v_mov_b32 v12, 0")
        k.e("v_mov_b32 v13, 0")
        k.e("v_mov_b32 v14, 0x3f803f80")
        nst = 0
        for i in range(kpw):
            k.e("s_waitcnt vmcnt(%d)" % (2 * (kpw - 1 - i) + nst))
            for t in range(2):
                d = 16 + 8 * (i & 1) + 4 * t
                k.e("ds_read_b64_tr_b16 %s, v10 offset:%d" % (vr(d, 2), i * 2048 + t * 64))
                k.e("ds_read_b64_tr_b16 %s, v10 offset:%d" % (vr(d + 2, 2), i * 2048 + t * 64 + 512))
            k.e("s_waitcnt lgkmcnt(0)")
            for t in range(2):
                d = 16 + 8 * (i & 1) + 4 * t
                k.e("s_add_u32 s%d, s%d, %d" % (s_t2, s_t, (t * KSN + i) * 1024))
                k.e("buffer_store_dwordx4 %s, v5, %s, s%d offen" % (vr(d, 4), sr(SO, 4), s_t2))
                nst += 1
                if cs is not None:
                    for j in range(4):
                        k.e("v_dot2_f32_bf16 v%d, v%d, v14, v%d" % (12 + t, d + j, 12 + t))
        if cs is not None:
            k.e("s_nop 3")
            k.e("v_mov_b32 v32, v12")
            k.e("v_mov_b32 v33, v13")
            k.e("s_nop 1")
            k.e("v_permlane32_swap_b32 v12, v32")
            k.e("v_permlane32_swap_b32 v13, v33")
            k.e("s_nop 1")
            k.e("v_add_f32 v12, v12, v32")
            k.e("v_add_f32 v13, v13, v33")
            k.e("v_cmp_gt_u32 vcc, 32, v1")
            k.e("s_nop 1")
            k.e("v_cndmask_b32 v12, v13, v12, vcc")
            k.e("v_lshlrev_b32 v7, 2, v1")
            k.e("s_lshl_b32 s%d, s%d, 8" % (s_t, s_w8))
            k.e("v_add_u32 v8, s%d, v7" % s_t)
            k.e("v_add_u32 v8, 131072, v8")
            k.e("ds_write_b32 v8, v12")
            k.e("s_waitcnt lgkmcnt(0)")
            k.e("s_barrier")
            k.e("s_lshl_b32 s%d, s%d, 10" % (s_t, s_team))
            k.e("v_add_u32 v8, s%d, v7" % s_t)
            k.e("v_add_u32 v8, 131072, v8")
            for w2 in range(4):
                k.e("ds_read_b32 v%d, v8 offset:%d" % (16 + w2, 256 * w2))
            k.e("s_waitcnt lgkmcnt(0)")
            k.e("v_add_f32 v16, v16, v17")
            k.e("v_add_f32 v18, v18, v19")
            k.e("v_add_f32 v16, v16, v18")
            k.srd(SS, P_WS, cs, n * 4)
            k.e("s_lshl_b32 s%d, s%d, 8" % (s_t, s_nt))
            k.e("buffer_store_dword v16, v7, %s, s%d offen" % (sr(SS, 4), s_t))
        k.e("s_endpgm")
        k.label(lnext)
        base += nwgs[idx]


def prep(name):
    k = K(name, 128)
    segs = SEG_ALL[:1]
    NX = 128
    NWG = seg_wgs(segs) + NX
    k.prologue(NWG)
    SW, SO, SS = 28, 32, 36
    s_loc, s_st, s_w, s_t, s_nt, s_ks, s_t2, s_ch, s_lb = 48, 49, 52, 53, 54, 55, 56, 57, 58
    k.e("v_lshrrev_b32 v2, 6, v0")
    k.e("v_and_b32 v1, 63, v0")
    k.e("s_nop 0")
    k.e("v_readfirstlane_b32 s%d, v2" % s_w)
    k.e("s_waitcnt lgkmcnt(0)")
    lx = k.newlabel("xpart")
    k.e("s_cmp_lt_u32 s2, %d" % NX)
    k.e("s_cbranch_scc1 %s" % lx)
    emit_wsegs(k, segs, NX, s_w)
    k.label(lx)
    k.srd(SW, P_AX, 0, S * D * 2)
    k.srd(SO, P_WS, WS_X0, S * D * 2)
    k.srd(SS, P_WS, WS_ST0, S * 256)
    k.e("s_lshl_b32 s%d, s2, 2" % s_t)
    k.e("s_add_u32 s%d, s%d, s%d" % (s_t, s_t, s_w))
    k.e("s_lshr_b32 s%d, s%d, 3" % (s_nt, s_t))
    k.e("s_and_b32 s%d, s%d, 7" % (s_ks, s_t))
    k.e("v_lshrrev_b32 v5, 5, v1")
    k.e("v_and_b32 v4, 31, v1")
    k.e("v_lshlrev_b32 v3, 10, v4")
    k.e("v_lshl_add_u32 v3, v5, 4, v3")
    k.e("s_lshl_b32 s%d, s%d, 15" % (s_t2, s_nt))
    k.e("s_lshl_b32 s%d, s%d, 7" % (s_st, s_ks))
    k.e("s_add_u32 s%d, s%d, s%d" % (s_t2, s_t2, s_st))
    for i in range(4):
        k.e("buffer_load_dwordx4 %s, v3, %s, s%d offen offset:%d" % (vr(8 + 4 * i, 4), sr(SW, 4), s_t2, 32 * i))
    k.e("v_lshlrev_b32 v6, 4, v1")
    k.e("s_lshl_b32 s%d, s%d, 12" % (s_t, s_t))
    k.e("v_mov_b32 v7, 0x3f803f80")
    for r in range(24, 28):
        k.e("v_mov_b32 v%d, 0" % r)
    k.e("v_lshlrev_b32 v28, 4, v4")
    k.e("v_lshl_add_u32 v28, v5, 3, v28")
    k.e("s_lshl_b32 s%d, s%d, 9" % (s_t2, s_nt))
    k.e("s_lshl_b32 s%d, s%d, 16" % (s_st, s_ks))
    k.e("s_add_u32 s%d, s%d, s%d" % (s_t2, s_t2, s_st))
    k.e("s_add_u32 s%d, s%d, 32768" % (s_st, s_t2))
    for i in range(4):
        k.e("s_waitcnt vmcnt(3)")
        k.e("buffer_store_dwordx4 %s, v6, %s, s%d offen offset:%d" % (vr(8 + 4 * i, 4), sr(SO, 4), s_t, 1024 * i))
        a = 24 + 2 * (i >> 1)
        for j in range(4):
            k.e("v_dot2_f32_bf16 v%d, v%d, v7, v%d" % (a, 8 + 4 * i + j, a))
            k.e("v_dot2_f32_bf16 v%d, v%d, v%d, v%d" % (a + 1, 8 + 4 * i + j, 8 + 4 * i + j, a + 1))
    k.e("s_nop 3")
    k.e("buffer_store_dwordx2 v[24:25], v28, %s, s%d offen" % (sr(SS, 4), s_t2))
    k.e("buffer_store_dwordx2 v[26:27], v28, %s, s%d offen" % (sr(SS, 4), s_st))
    k.end()
    return k, NWG, 256, 65536 + 1024


def lngemm(name, xoff, stoff, wsoff, csoff, N, kind, extra=None):
    NCB = N // 256
    NWG = 32 * NCB
    NTOT = NWG + (seg_wgs(extra) if extra else 0)
    k = K(name, 256, 256)
    k.prologue(NTOT)
    SX, SW, SO, SB, SS, SC = 28, 32, 36, 40, 44, 64
    s_rb, s_cb, s_w, s_t, s_wbase, s_t2, s_scale, s_obase, s_nb = 48, 49, 50, 51, 52, 54, 55, 56, 57
    STL = 65536
    magic = (1 << 32) // (8 * NCB) + 1
    k.e("s_and_b32 s%d, s2, 7" % s_t)
    k.e("s_mul_i32 s%d, s%d, %d" % (s_t, s_t, 4 * NCB))
    k.e("s_lshr_b32 s%d, s2, 3" % s_t2)
    k.e("s_add_u32 s%d, s%d, s%d" % (s_t2, s_t2, s_t))
    k.e("s_mov_b32 s%d, %s" % (s_t, hx(magic)))
    k.e("s_mul_hi_u32 s%d, s%d, s%d" % (s_rb, s_t2, s_t))
    k.e("s_mul_i32 s%d, s%d, %d" % (s_t, s_rb, 8 * NCB))
    k.e("s_sub_u32 s%d, s%d, s%d" % (s_t2, s_t2, s_t))
    k.e("s_lshr_b32 s%d, s%d, 3" % (s_cb, s_t2))
    k.e("s_and_b32 s%d, s%d, 7" % (s_t2, s_t2))
    k.e("s_lshl_b32 s%d, s%d, 3" % (s_rb, s_rb))
    k.e("s_add_u32 s%d, s%d, s%d" % (s_rb, s_rb, s_t2))
    k.e("v_lshrrev_b32 v2, 6, v0")
    k.e("v_and_b32 v1, 63, v0")
    k.e("v_lshrrev_b32 v5, 5, v1")
    k.e("v_readfirstlane_b32 s%d, v2" % s_w)
    k.e("v_lshlrev_b32 v3, 4, v1")
    k.e("s_waitcnt lgkmcnt(0)")
    if extra:
        lmain = k.newlabel("main")
        k.e("s_cmp_lt_u32 s2, %d" % NWG)
        k.e("s_cbranch_scc1 %s" % lmain)
        emit_wsegs(k, extra, NWG, s_w)
        k.label(lmain)
    k.srd(SX, P_WS, xoff, S * D * 2)
    k.srd(SW, P_WS, wsoff, D * N * 2)
    k.srd(SS, P_WS, stoff, S * 256)
    k.srd(SC, P_WS, csoff, N * 4)
    k.stamp()
    k.e("s_lshl_b32 s%d, s%d, 16" % (s_t, s_rb))
    k.e("s_lshl_b32 s%d, s%d, 14" % (s_t2, s_w))
    k.e("s_add_u32 s%d, s%d, s%d" % (s_t, s_t, s_t2))
    for q in range(4):
        k.e("s_add_u32 m0, s%d, %d" % (s_t2, q * 4096))
        k.e("s_add_u32 s%d, s%d, %d" % (s_t + 8, s_t, q * 4096))
        for i in range(4):
            k.vmem("buffer_load_dwordx4 v3, %s, s%d offen offset:%d lds" % (sr(SX, 4), s_t + 8, i * 1024), "x")
    k.e("s_lshl_b32 s%d, s%d, 3" % (s_t, s_cb))
    k.e("s_lshl_b32 s%d, s%d, 1" % (s_t2, s_w))
    k.e("s_add_u32 s%d, s%d, s%d" % (s_t, s_t, s_t2))
    k.e("s_lshl_b32 s%d, s%d, 15" % (s_wbase, s_t))

    def wload(ct, ks):
        sg = s_t + 10 + ct
        if ks % 4 == 0:
            k.e("s_add_u32 s%d, s%d, %d" % (sg, s_wbase, ct * 32768 + ks * 1024))
        k.vmem("buffer_load_dwordx4 %s, v3, %s, s%d offen offset:%d" % (ar((ct * 32 + ks) * 4, 4), sr(SW, 4), sg, (ks % 4) * 1024), ("w", ct, ks))

    LA = EXP.get("la", 8)
    for ks in range(LA):
        wload(0, ks)
    ST = 64
    ACC = 128
    for r in range(64):
        k.e("v_mov_b32 v%d, 0" % (ACC + r))
    k.stamp()
    k.vwait("x")
    k.e("s_barrier")
    k.stamp()

    def stload(i):
        if i == 0:
            k.e("s_lshl_b32 s%d, s%d, 10" % (s_t + 9, s_rb))
        k.vmem("buffer_load_dwordx4 %s, v3, %s, s%d offen" % (vr(ST + 4 * i, 4), sr(SS, 4), s_t + 9), "st")
        k.e("s_add_u32 s%d, s%d, 32768" % (s_t + 9, s_t + 9))
    k.e("s_lshl_b32 s%d, s%d, 8" % (s_nb, s_cb))
    k.e("s_lshl_b32 s%d, s%d, 6" % (s_t2, s_w))
    k.e("s_add_u32 s%d, s%d, s%d" % (s_nb, s_nb, s_t2))
    FRG = 32

    def xreads(ks):
        b = FRG + 8 * (ks & 3)
        for rt in range(2):
            k.e("ds_read_b128 %s, v3 offset:%d" % (vr(b + 4 * rt, 4), rt * 32768 + ks * 1024))

    def mfma(transposed, rt, ct, ks):
        a = ACC + 16 * (2 * rt + ct)
        b = FRG + 8 * (ks & 3)
        xf, wf = vr(b + 4 * rt, 4), ar((ct * 32 + ks) * 4, 4)
        if transposed:
            k.e("v_mfma_f32_32x32x16_bf16 %s, %s, %s, %s" % (vr(a, 16), wf, xf, vr(a, 16)))
        else:
            k.e("v_mfma_f32_32x32x16_bf16 %s, %s, %s, %s" % (vr(a, 16), xf, wf, vr(a, 16)))

    def stats_math(scale_sgpr):
        k.vwait("st")
        for i in range(4, 32):
            k.e("v_pk_add_f32 %s, %s, %s" % (vr(ST + 2 * (i & 3), 2), vr(ST + 2 * (i & 3), 2), vr(ST + 2 * i, 2)))
        k.e("v_pk_add_f32 v[64:65], v[64:65], v[66:67]")
        k.e("v_pk_add_f32 v[68:69], v[68:69], v[70:71]")
        k.e("v_pk_add_f32 v[64:65], v[64:65], v[68:69]")
        k.e("v_mul_f32 v17, %s, v64" % hx(f32bits(1.0 / D)))
        k.e("v_mul_f32 v16, %s, v65" % hx(f32bits(1.0 / D)))
        k.e("v_fma_f32 v16, -v17, v17, v16")
        k.e("v_max_f32 v16, 0, v16")
        k.e("v_cvt_pk_bf16_f32 v18, v17, v16")
        k.e("v_lshlrev_b32 v17, 16, v18")
        k.e("v_and_b32 v16, 0xffff0000, v18")
        k.e("v_add_f32 v16, %s, v16" % hx(f32bits(1e-5)))
        k.e("v_cvt_pk_bf16_f32 v18, v16, v16")
        k.e("v_and_b32 v16, 0xffff0000, v18")
        k.e("v_sqrt_f32 v16, v16")
        k.e("s_nop 0")
        k.e("v_cvt_pk_bf16_f32 v18, v16, v16")
        k.e("v_and_b32 v16, 0xffff0000, v18")
        k.e("v_rcp_f32 v16, v16")
        k.e("s_nop 0")
        if scale_sgpr is not None:
            k.e("v_mul_f32 v16, s%d, v16" % scale_sgpr)
        k.e("v_mul_f32 v17, v17, v16")
        k.e("v_sub_f32 v17, 0, v17")

    def phase1(transposed):
        xreads(0)
        xreads(1)
        for ks in range(32):
            if ks + 2 < 32:
                xreads(ks + 2)
            if ks + LA < 32:
                wload(0, ks + LA)
            else:
                wload(1, ks + LA - 32)
            if 8 <= ks < 24:
                stload(ks - 8)
            k.vwait(("w", 0, ks), " lgkmcnt(%d)" % (2 * min(2, 31 - ks)))
            for rt in range(2):
                mfma(transposed, rt, 0, ks)

    def phase2(transposed, epi):
        xreads(0)
        xreads(1)
        n = len(epi)
        pos = 0
        for ks in range(32):
            if ks + 2 < 32:
                xreads(ks + 2)
            if ks + LA < 32:
                wload(1, ks + LA)
            k.vwait(("w", 1, ks), " lgkmcnt(%d)" % (2 * min(2, 31 - ks)))
            for rt in range(2):
                mfma(transposed, rt, 1, ks)
            if ks >= 3:
                tgt = n * (ks - 2) // 29
                while pos < tgt:
                    ins = epi[pos]
                    if ins.startswith("buffer_store"):
                        k.vmem(ins, "store")
                    else:
                        k.e(ins)
                    pos += 1
        assert pos == n
        k.e("s_nop 15")
        k.e("s_nop 3")

    def emit(lst):
        for ins in lst:
            if ins.startswith("buffer_store"):
                k.vmem(ins, "store")
            else:
                k.e(ins)

    def load_cs_T():
        k.e("v_lshlrev_b32 v28, 4, v5")
        k.e("s_lshl_b32 s%d, s%d, 2" % (s_t, s_nb))
        for ct in range(2):
            for g in range(4):
                k.vmem("buffer_load_dwordx4 %s, v28, %s, s%d offen offset:%d" % (vr(CSR + 16 * ct + 4 * g, 4), sr(SC, 4), s_t, (ct * 32 + 8 * g) * 4), "cs")

    CSR = 192

    def t_ab():
        k.e("v_mov_b32 v18, v16")
        k.e("v_mov_b32 v19, v17")
        k.e("s_nop 1")
        k.e("v_permlane32_swap_b32 v16, v18")
        k.e("v_permlane32_swap_b32 v17, v19")
        k.e("s_nop 1")
        for rt, (aa, bb) in enumerate(((16, 17), (18, 19))):
            k.e("v_mov_b32 v%d, v%d" % (20 + 4 * rt, aa))
            k.e("v_mov_b32 v%d, v%d" % (21 + 4 * rt, aa))
            k.e("v_mov_b32 v%d, v%d" % (22 + 4 * rt, bb))
            k.e("v_mov_b32 v%d, v%d" % (23 + 4 * rt, bb))

    def ln_apply_T(out, r0, rt, csr):
        for p in range(2):
            out.append("v_pk_mul_f32 %s, %s, %s" % (vr(r0 + 2 * p, 2), vr(r0 + 2 * p, 2), vr(20 + 4 * rt, 2)))
        for p in range(2):
            out.append("v_pk_fma_f32 %s, %s, %s, %s" % (vr(r0 + 2 * p, 2), vr(csr + 2 * p, 2), vr(22 + 4 * rt, 2), vr(r0 + 2 * p, 2)))

    if kind == 'qkv':
        lv = k.newlabel("vpath")
        k.e("s_cmp_ge_u32 s%d, 4" % s_cb)
        k.e("s_cbranch_scc1 %s" % lv)
        vm_save = list(k.vm)
        load_cs_T()
        k.e("s_cmp_lt_u32 s%d, 2" % s_cb)
        k.e("s_cselect_b32 s%d, %s, 1.0" % (s_scale, hx(f32bits(QSCALE))))
        k.e("s_cselect_b32 s%d, %d, %d" % (s_obase, WS_Q, WS_K))
        k.srd(SO, P_WS, 0, 6 * MB)
        k.e("s_and_b32 s%d, s%d, 1" % (s_t, s_cb))
        k.e("s_lshl_b32 s%d, s%d, 20" % (s_t, s_t))
        k.e("s_add_u32 s%d, s%d, s%d" % (s_obase, s_obase, s_t))
        k.e("s_lshl_b32 s%d, s%d, 18" % (s_t, s_w))
        k.e("s_add_u32 s%d, s%d, s%d" % (s_obase, s_obase, s_t))
        k.e("s_lshl_b32 s%d, s%d, 11" % (s_t, s_rb))
        k.e("s_add_u32 s%d, s%d, s%d" % (s_obase, s_obase, s_t))
        k.e("v_and_b32 v29, 31, v1")
        k.e("v_lshlrev_b32 v29, 4, v29")
        k.e("v_lshl_add_u32 v29, v5, 3, v29")
        phase1(True)
        stats_math(s_scale)
        t_ab()
        k.vwait("cs")

        def epi_qk(ct):
            out = []
            for rt in range(2):
                a = ACC + 16 * (2 * rt + ct)
                for g in range(4):
                    r0 = a + 4 * g
                    ln_apply_T(out, r0, rt, CSR + 16 * ct + 4 * g)
                    t0 = 8 + 2 * ((rt * 4 + g) & 3)
                    out.append("v_cvt_pk_bf16_f32 v%d, %s, %s" % (t0, vr(r0), vr(r0 + 1)))
                    out.append("v_cvt_pk_bf16_f32 v%d, %s, %s" % (t0 + 1, vr(r0 + 2), vr(r0 + 3)))
                    out.append("s_add_u32 s%d, s%d, %d" % (s_t, s_obase, (ct * 2 + (g >> 1)) * 65536 + rt * 1024 + (g & 1) * 512))
                    out.append("buffer_store_dwordx2 v[%d:%d], v29, %s, s%d offen" % (t0, t0 + 1, sr(SO, 4), s_t))
            return out
        phase2(True, epi_qk(0))
        emit(epi_qk(1))
        k.e("s_endpgm")
        k.label(lv)
        k.vm = vm_save
        k.e("v_and_b32 v28, 31, v1")
        k.e("v_lshlrev_b32 v28, 2, v28")
        k.e("s_lshl_b32 s%d, s%d, 2" % (s_t, s_nb))
        for ct in range(2):
            k.vmem("buffer_load_dword v%d, v28, %s, s%d offen offset:%d" % (30 + ct, sr(SC, 4), s_t, ct * 128), "cs")
        k.srd(SO, P_WS, WS_V, 2 * MB)
        k.e("s_and_b32 s%d, s%d, 1" % (s_t, s_cb))
        k.e("s_lshl_b32 s%d, s%d, 20" % (s_obase, s_t))
        k.e("s_lshl_b32 s%d, s%d, 18" % (s_t, s_w))
        k.e("s_add_u32 s%d, s%d, s%d" % (s_obase, s_obase, s_t))
        k.e("s_lshl_b32 s%d, s%d, 11" % (s_t, s_rb))
        k.e("s_add_u32 s%d, s%d, s%d" % (s_obase, s_obase, s_t))
        k.e("v_bfe_u32 v29, v1, 4, 1")
        k.e("v_lshlrev_b32 v29, 16, v29")
        k.e("v_lshl_add_u32 v29, v5, 8, v29")
        k.e("v_and_b32 v28, 15, v1")
        k.e("v_lshl_add_u32 v29, v28, 4, v29")
        phase1(False)
        stats_math(None)
        k.e("v_lshlrev_b32 v18, 3, v1")
        k.e("s_lshl_b32 s%d, s%d, 9" % (s_t, s_w))
        k.e("s_add_u32 s%d, s%d, %d" % (s_t, s_t, STL))
        k.e("v_add_u32 v18, s%d, v18" % s_t)
        k.e("ds_write_b64 v18, v[16:17]")
        k.e("v_lshlrev_b32 v18, 5, v5")
        k.e("v_add_u32 v18, s%d, v18" % s_t)
        k.e("s_waitcnt lgkmcnt(0)")
        AB = 192
        for rt in range(2):
            for g in range(4):
                for h2 in range(2):
                    k.e("ds_read_b128 %s, v18 offset:%d" % (vr(AB + 32 * rt + 8 * g + 4 * h2, 4), (rt * 32 + 8 * g) * 8 + 16 * h2))
        k.e("s_waitcnt lgkmcnt(0)")
        k.vwait("cs")

        def epi_v(ct):
            out = []
            for rt in range(2):
                a = ACC + 16 * (2 * rt + ct)
                for r in range(16):
                    ab = AB + 32 * rt + 2 * r
                    out.append("v_mul_f32 %s, %s, %s" % (vr(a + r), vr(a + r), vr(ab)))
                    out.append("v_fma_f32 %s, %s, v%d, %s" % (vr(a + r), vr(ab + 1), 30 + ct, vr(a + r)))
                for half in range(2):
                    t0 = 8 + 4 * half
                    for j in range(4):
                        r0 = a + 8 * half + 2 * j
                        out.append("v_cvt_pk_bf16_f32 v%d, %s, %s" % (t0 + j, vr(r0), vr(r0 + 1)))
                    out.append("s_add_u32 s%d, s%d, %d" % (s_t, s_obase, ct * 2 * 65536 + (rt * 2 + half) * 512))
                    out.append("buffer_store_dwordx4 v[%d:%d], v29, %s, s%d offen" % (t0, t0 + 3, sr(SO, 4), s_t))
                    out.append("s_nop 1")
            return out
        phase2(False, epi_v(0))
        emit(epi_v(1))
    else:
        load_cs_T()
        k.srd(SB, P_B1, 0, F * 2)
        k.srd(SO, P_WS, WS_H, S * F * 2)
        k.e("s_lshl_b32 s%d, s%d, 1" % (s_scale, s_nb))
        k.e("v_lshlrev_b32 v28, 3, v5")
        BI = 224
        for ct in range(2):
            for g in range(4):
                k.vmem("buffer_load_dwordx2 %s, v28, %s, s%d offen offset:%d" % (vr(BI + 2 * (4 * ct + g), 2), sr(SB, 4), s_scale, (ct * 32 + 8 * g) * 2), "cs")
        k.e("s_mul_i32 s%d, s%d, %d" % (s_obase, s_rb, 2 * 112 * 1024))
        k.e("s_lshl_b32 s%d, s%d, 6" % (s_t, s_nb))
        k.e("s_add_u32 s%d, s%d, s%d" % (s_obase, s_obase, s_t))
        k.e("v_and_b32 v29, 31, v1")
        k.e("v_lshlrev_b32 v29, 4, v29")
        k.e("v_add_u32 v29, v29, v28")
        phase1(True)
        k.stamp()
        stats_math(None)
        t_ab()
        k.vwait("cs")
        BF = 96
        for q in range(8):
            for h2 in range(2):
                k.e("v_lshlrev_b32 %s, 16, %s" % (vr(BF + 4 * q + 2 * h2), vr(BI + 2 * q + h2)))
                k.e("v_and_b32 %s, 0xffff0000, %s" % (vr(BF + 4 * q + 2 * h2 + 1), vr(BI + 2 * q + h2)))
        c1 = -2.0 * 0.7978845608028654 * 1.4426950408889634
        k.e("v_mov_b32 v240, %s" % hx(f32bits(c1 * 0.044715)))
        k.e("v_mov_b32 v241, %s" % hx(f32bits(c1 * 0.044715)))
        k.e("v_mov_b32 v242, %s" % hx(f32bits(c1)))
        k.e("v_mov_b32 v243, %s" % hx(f32bits(c1)))
        k.e("v_mov_b32 v244, 1.0")
        k.e("v_mov_b32 v245, 1.0")

        def epi_f(ct):
            out = []
            for rt in range(2):
                a = ACC + 16 * (2 * rt + ct)
                for g in range(4):
                    r0 = a + 4 * g
                    bq = BF + 4 * (4 * ct + g)
                    ln_apply_T(out, r0, rt, CSR + 16 * ct + 4 * g)
                    for p in range(2):
                        out.append("v_pk_add_f32 %s, %s, %s" % (vr(r0 + 2 * p, 2), vr(r0 + 2 * p, 2), vr(bq + 2 * p, 2)))
                    for p in range(2):
                        round_pair(out, r0 + 2 * p, r0 + 2 * p + 1, 8 + p)
                    T = 10
                    for p in range(2):
                        out.append("v_pk_mul_f32 %s, %s, %s" % (vr(T + 2 * p, 2), vr(r0 + 2 * p, 2), vr(r0 + 2 * p, 2)))
                    for p in range(2):
                        out.append("v_pk_fma_f32 %s, %s, v[240:241], v[242:243]" % (vr(T + 2 * p, 2), vr(T + 2 * p, 2)))
                    for p in range(2):
                        out.append("v_pk_mul_f32 %s, %s, %s" % (vr(T + 2 * p, 2), vr(T + 2 * p, 2), vr(r0 + 2 * p, 2)))
                    for j in range(4):
                        out.append("v_exp_f32 v%d, v%d" % (T + j, T + j))
                    out.append("s_nop 0")
                    for p in range(2):
                        out.append("v_pk_add_f32 %s, %s, v[244:245]" % (vr(T + 2 * p, 2), vr(T + 2 * p, 2)))
                    for j in range(4):
                        out.append("v_rcp_f32 v%d, v%d" % (T + j, T + j))
                    out.append("s_nop 0")
                    for p in range(2):
                        out.append("v_pk_mul_f32 %s, %s, %s" % (vr(r0 + 2 * p, 2), vr(r0 + 2 * p, 2), vr(T + 2 * p, 2)))
                    t0 = 246 + 2 * (g & 1)
                    out.append("v_cvt_pk_bf16_f32 v%d, %s, %s" % (t0, vr(r0), vr(r0 + 1)))
                    out.append("v_cvt_pk_bf16_f32 v%d, %s, %s" % (t0 + 1, vr(r0 + 2), vr(r0 + 3)))
                    out.append("s_add_u32 s%d, s%d, %d" % (s_t, s_obase, rt * 112 * 1024 + (ct * 2 + (g >> 1)) * 1024 + (g & 1) * 512))
                    out.append("buffer_store_dwordx2 v[%d:%d], v29, %s, s%d offen" % (t0, t0 + 1, sr(SO, 4), s_t))
            return out
        k.stamp()
        phase2(True, epi_f(0))
        k.stamp()
        emit(epi_f(1))
        k.stamp()
        k.stamp_out(s_w)
    k.end()
    return k, NTOT, 256, 65536 + 2048


def lngemm8(name, xoff, stoff, wsoff, csoff, N, kind, extra=None):
    NCB = N // 256
    NWG = 32 * NCB
    NTOT = NWG + (seg_wgs(extra) if extra else 0)
    k = K(name, 128, 128)
    k.prologue(NTOT)
    e = k.e
    SX, SW, SO, SB, SS, SC = 28, 32, 36, 40, 44, 64
    s_rb, s_cb, s_w, s_t, s_wbase, s_t2, s_scale, s_obase, s_nb, s_T = 48, 49, 50, 51, 52, 54, 55, 56, 57, 58
    STL = 65536
    magic = (1 << 32) // (8 * NCB) + 1
    e("s_and_b32 s%d, s2, 7" % s_t)
    e("s_mul_i32 s%d, s%d, %d" % (s_t, s_t, 4 * NCB))
    e("s_lshr_b32 s%d, s2, 3" % s_t2)
    e("s_add_u32 s%d, s%d, s%d" % (s_t2, s_t2, s_t))
    e("s_mov_b32 s%d, %s" % (s_t, hx(magic)))
    e("s_mul_hi_u32 s%d, s%d, s%d" % (s_rb, s_t2, s_t))
    e("s_mul_i32 s%d, s%d, %d" % (s_t, s_rb, 8 * NCB))
    e("s_sub_u32 s%d, s%d, s%d" % (s_t2, s_t2, s_t))
    e("s_lshr_b32 s%d, s%d, 3" % (s_cb, s_t2))
    e("s_and_b32 s%d, s%d, 7" % (s_t2, s_t2))
    e("s_lshl_b32 s%d, s%d, 3" % (s_rb, s_rb))
    e("s_add_u32 s%d, s%d, s%d" % (s_rb, s_rb, s_t2))
    e("v_lshrrev_b32 v2, 6, v0")
    e("v_and_b32 v1, 63, v0")
    e("v_lshrrev_b32 v5, 5, v1")
    e("v_readfirstlane_b32 s%d, v2" % s_w)
    e("v_lshlrev_b32 v3, 4, v1")
    e("s_waitcnt lgkmcnt(0)")
    if extra:
        lmain = k.newlabel("main")
        e("s_cmp_lt_u32 s2, %d" % NWG)
        e("s_cbranch_scc1 %s" % lmain)
        e("s_cmp_ge_u32 s%d, 4" % s_w)
        e("s_cbranch_scc1 L_%s_end" % name)
        emit_wsegs(k, extra, NWG, s_w)
        k.label(lmain)
    k.srd(SX, P_WS, xoff, S * D * 2)
    k.srd(SW, P_WS, wsoff, D * N * 2)
    k.srd(SS, P_WS, stoff, S * 256)
    k.srd(SC, P_WS, csoff, N * 4)
    e("s_lshl_b32 s%d, s%d, 16" % (s_t, s_rb))
    e("s_lshl_b32 s%d, s%d, 13" % (s_t2, s_w))
    e("s_add_u32 s%d, s%d, s%d" % (s_t, s_t, s_t2))
    for q in range(2):
        e("s_add_u32 m0, s%d, %d" % (s_t2, q * 4096))
        e("s_add_u32 s%d, s%d, %d" % (s_t + 8, s_t, q * 4096))
        for i in range(4):
            k.vmem("buffer_load_dwordx4 v3, %s, s%d offen offset:%d lds" % (sr(SX, 4), s_t + 8, i * 1024), "x")
    e("s_lshl_b32 s%d, s%d, 3" % (s_T, s_cb))
    e("s_add_u32 s%d, s%d, s%d" % (s_T, s_T, s_w))
    e("s_lshl_b32 s%d, s%d, 15" % (s_wbase, s_T))
    e("s_lshl_b32 s%d, s%d, 5" % (s_nb, s_T))

    def wload(ks):
        sg = s_t + 10
        if ks % 4 == 0:
            e("s_add_u32 s%d, s%d, %d" % (sg, s_wbase, ks * 1024))
        k.vmem("buffer_load_dwordx4 %s, v3, %s, s%d offen offset:%d" % (ar(ks * 4, 4), sr(SW, 4), sg, (ks % 4) * 1024), ("w", ks))

    LA = EXP.get("la8", 8)
    for ks in range(LA):
        wload(ks)
    ST = 64
    e("v_lshrrev_b32 v24, 3, v1")
    e("v_and_b32 v25, 7, v1")
    e("v_lshlrev_b32 v25, 16, v25")
    e("v_lshl_add_u32 v24, v24, 4, v25")
    e("s_lshl_b32 s%d, s%d, 10" % (s_t + 9, s_rb))
    e("s_lshl_b32 s%d, s%d, 7" % (s_t + 8, s_w))
    e("s_add_u32 s%d, s%d, s%d" % (s_t + 9, s_t + 9, s_t + 8))
    k.vmem("buffer_load_dwordx4 %s, v24, %s, s%d offen" % (vr(ST, 4), sr(SS, 4), s_t + 9), "st")
    e("s_add_u32 s%d, s%d, 32768" % (s_t + 9, s_t + 9))
    k.vmem("buffer_load_dwordx4 %s, v24, %s, s%d offen" % (vr(ST + 4, 4), sr(SS, 4), s_t + 9), "st")
    ACC = 32
    FRG = 96
    CSR = 8
    for r in range(32):
        e("v_mov_b32 v%d, 0" % (ACC + r))

    def stload(i):
        if i == 0:
            e("s_lshl_b32 s%d, s%d, 10" % (s_t + 9, s_rb))
        k.vmem("buffer_load_dwordx4 %s, v3, %s, s%d offen" % (vr(ST + 4 * (i % 6), 4), sr(SS, 4), s_t + 9), ("st", i))
        e("s_add_u32 s%d, s%d, 32768" % (s_t + 9, s_t + 9))

    def xreads(ks):
        b = FRG + 8 * (ks & 3)
        for rt in range(2):
            e("ds_read_b128 %s, v3 offset:%d" % (vr(b + 4 * rt, 4), rt * 32768 + ks * 1024))

    def main(tr):
        if EXP.get("prio", 1):
            lp = k.newlabel("prio")
            e("s_cmp_ge_u32 s%d, 4" % s_w)
            e("s_cbranch_scc1 %s" % lp)
            e("s_setprio 2")
            k.label(lp)
        k.vwait("x")
        e("s_barrier")
        xreads(0)
        xreads(1)
        for ks in range(32):
            if ks + 2 < 32:
                xreads(ks + 2)
            if ks + LA < 32:
                wload(ks + LA)
            if ks == 6:
                stats_math()
            if ks == 8:
                e("s_barrier")
            k.vwait(("w", ks), " lgkmcnt(%d)" % (2 * min(2, 31 - ks)))
            b = FRG + 8 * (ks & 3)
            for rt in range(2):
                a = ACC + 16 * rt
                xf, wf = vr(b + 4 * rt, 4), ar(ks * 4, 4)
                if tr:
                    e("v_mfma_f32_32x32x16_bf16 %s, %s, %s, %s" % (vr(a, 16), wf, xf, vr(a, 16)))
                else:
                    e("v_mfma_f32_32x32x16_bf16 %s, %s, %s, %s" % (vr(a, 16), xf, wf, vr(a, 16)))

    def stats_math():
        k.vwait("st")
        e("v_pk_add_f32 v[64:65], v[64:65], v[66:67]")
        e("v_pk_add_f32 v[68:69], v[68:69], v[70:71]")
        e("v_pk_add_f32 v[24:25], v[64:65], v[68:69]")
        for ctl in ("quad_perm:[1,0,3,2]", "quad_perm:[2,3,0,1]", "row_half_mirror"):
            e("s_nop 1")
            e("v_add_f32_dpp v24, v24, v24 %s row_mask:0xf bank_mask:0xf" % ctl)
            e("v_add_f32_dpp v25, v25, v25 %s row_mask:0xf bank_mask:0xf" % ctl)
        e("v_mul_f32 v29, %s, v24" % hx(f32bits(1.0 / D)))
        e("v_mul_f32 v28, %s, v25" % hx(f32bits(1.0 / D)))
        e("v_fma_f32 v28, -v29, v29, v28")
        e("v_max_f32 v28, 0, v28")
        e("v_cvt_pk_bf16_f32 v30, v29, v28")
        e("v_lshlrev_b32 v29, 16, v30")
        e("v_and_b32 v28, 0xffff0000, v30")
        e("v_add_f32 v28, %s, v28" % hx(f32bits(1e-5)))
        e("v_cvt_pk_bf16_f32 v30, v28, v28")
        e("v_and_b32 v28, 0xffff0000, v30")
        e("v_sqrt_f32 v28, v28")
        e("s_nop 0")
        e("v_cvt_pk_bf16_f32 v30, v28, v28")
        e("v_and_b32 v28, 0xffff0000, v30")
        e("v_rcp_f32 v28, v28")
        e("s_nop 0")
        e("v_mul_f32 v29, v29, v28")
        e("v_sub_f32 v29, 0, v29")
        e("v_lshrrev_b32 v30, 3, v1")
        e("v_lshlrev_b32 v30, 3, v30")
        e("s_lshl_b32 s%d, s%d, 6" % (s_t + 8, s_w))
        e("s_add_u32 s%d, s%d, %d" % (s_t + 8, s_t + 8, STL))
        e("v_add_u32 v30, s%d, v30" % (s_t + 8))
        e("ds_write_b64 v30, v[28:29]")
        e("s_waitcnt lgkmcnt(0)")

    def t_ab(scale):
        e("v_lshlrev_b32 v30, 3, v4")
        e("v_add_u32 v30, %d, v30" % STL)
        e("ds_read_b64 v[28:29], v30")
        e("ds_read_b64 v[30:31], v30 offset:256")
        e("s_waitcnt lgkmcnt(0)")
        if scale:
            for r in range(28, 32):
                e("v_mul_f32 v%d, s%d, v%d" % (r, s_scale, r))
        for rt, (aa, bb) in enumerate(((28, 29), (30, 31))):
            e("v_mov_b32 v%d, v%d" % (64 + 4 * rt, aa))
            e("v_mov_b32 v%d, v%d" % (65 + 4 * rt, aa))
            e("v_mov_b32 v%d, v%d" % (66 + 4 * rt, bb))
            e("v_mov_b32 v%d, v%d" % (67 + 4 * rt, bb))

    def ln_T(r0, rt, csr):
        for p in range(2):
            e("v_pk_mul_f32 %s, %s, %s" % (vr(r0 + 2 * p, 2), vr(r0 + 2 * p, 2), vr(64 + 4 * rt, 2)))
        for p in range(2):
            e("v_pk_fma_f32 %s, %s, %s, %s" % (vr(r0 + 2 * p, 2), vr(csr + 2 * p, 2), vr(66 + 4 * rt, 2), vr(r0 + 2 * p, 2)))

    def load_cs_T():
        e("v_lshlrev_b32 v6, 4, v5")
        e("s_lshl_b32 s%d, s%d, 2" % (s_t, s_nb))
        for g in range(4):
            k.vmem("buffer_load_dwordx4 %s, v6, %s, s%d offen offset:%d" % (vr(CSR + 4 * g, 4), sr(SC, 4), s_t, 32 * g), "cs")

    e("v_and_b32 v4, 31, v1")
    e("v_lshlrev_b32 v7, 4, v4")
    e("v_lshl_add_u32 v7, v5, 3, v7")
    if kind == 'qkv':
        lv = k.newlabel("vpath")
        e("s_cmp_ge_u32 s%d, 32" % s_T)
        e("s_cbranch_scc1 %s" % lv)
        vm_save = list(k.vm)
        load_cs_T()
        e("s_cmp_lt_u32 s%d, 16" % s_T)
        e("s_cselect_b32 s%d, %s, 1.0" % (s_scale, hx(f32bits(QSCALE))))
        k.srd(SO, P_WS, 0, 6 * MB)
        e("s_lshl_b32 s%d, s%d, 17" % (s_obase, s_T))
        e("s_lshl_b32 s%d, s%d, 11" % (s_t, s_rb))
        e("s_add_u32 s%d, s%d, s%d" % (s_obase, s_obase, s_t))
        main(True)
        t_ab(True)
        k.vwait("cs")
        e("s_nop 7")
        for rt in range(2):
            for g in range(4):
                r0 = ACC + 16 * rt + 4 * g
                ln_T(r0, rt, CSR + 4 * g)
                t0 = 72 + 2 * ((rt * 4 + g) & 3)
                e("v_cvt_pk_bf16_f32 v%d, %s, %s" % (t0, vr(r0), vr(r0 + 1)))
                e("v_cvt_pk_bf16_f32 v%d, %s, %s" % (t0 + 1, vr(r0 + 2), vr(r0 + 3)))
                e("s_add_u32 s%d, s%d, %d" % (s_t, s_obase, (g >> 1) * 65536 + rt * 1024 + (g & 1) * 512))
                e("buffer_store_dwordx2 v[%d:%d], v7, %s, s%d offen" % (t0, t0 + 1, sr(SO, 4), s_t))
        e("s_endpgm")
        k.label(lv)
        k.vm = vm_save
        e("v_lshlrev_b32 v6, 2, v4")
        e("s_lshl_b32 s%d, s%d, 2" % (s_t, s_nb))
        k.vmem("buffer_load_dword v8, v6, %s, s%d offen" % (sr(SC, 4), s_t), "cs")
        k.srd(SO, P_WS, WS_V, 2 * MB)
        e("s_sub_u32 s%d, s%d, 32" % (s_t, s_T))
        e("s_lshl_b32 s%d, s%d, 17" % (s_obase, s_t))
        e("s_lshl_b32 s%d, s%d, 11" % (s_t, s_rb))
        e("s_add_u32 s%d, s%d, s%d" % (s_obase, s_obase, s_t))
        e("v_bfe_u32 v7, v1, 4, 1")
        e("v_lshlrev_b32 v7, 16, v7")
        e("v_lshl_add_u32 v7, v5, 8, v7")
        e("v_and_b32 v6, 15, v1")
        e("v_lshl_add_u32 v7, v6, 4, v7")
        main(False)
        e("v_lshlrev_b32 v30, 5, v5")
        e("v_add_u32 v30, %d, v30" % STL)
        AB = 64
        for rt in range(2):
            for g in range(4):
                for h2 in range(2):
                    e("ds_read_b128 %s, v30 offset:%d" % (vr(AB + 32 * rt + 8 * g + 4 * h2, 4), (rt * 32 + 8 * g) * 8 + 16 * h2))
        e("s_waitcnt lgkmcnt(0)")
        k.vwait("cs")
        for rt in range(2):
            a = ACC + 16 * rt
            for r in range(16):
                ab = AB + 32 * rt + 2 * r
                e("v_mul_f32 %s, %s, %s" % (vr(a + r), vr(a + r), vr(ab)))
                e("v_fma_f32 %s, %s, v8, %s" % (vr(a + r), vr(ab + 1), vr(a + r)))
            for half in range(2):
                t0 = 12 + 4 * half
                for j in range(4):
                    r0 = a + 8 * half + 2 * j
                    e("v_cvt_pk_bf16_f32 v%d, %s, %s" % (t0 + j, vr(r0), vr(r0 + 1)))
                e("s_add_u32 s%d, s%d, %d" % (s_t, s_obase, (rt * 2 + half) * 512))
                e("buffer_store_dwordx4 v[%d:%d], v7, %s, s%d offen" % (t0, t0 + 3, sr(SO, 4), s_t))
                e("s_nop 1")
    else:
        load_cs_T()
        k.srd(SB, P_B1, 0, F * 2)
        k.srd(SO, P_WS, WS_H, S * F * 2)
        e("s_lshl_b32 s%d, s%d, 1" % (s_scale, s_nb))
        e("v_lshlrev_b32 v6, 3, v5")
        BI = BIR = 88
        for g in range(4):
            k.vmem("buffer_load_dwordx2 %s, v6, %s, s%d offen offset:%d" % (vr(BI + 2 * g, 2), sr(SB, 4), s_scale, 16 * g), "cs")
        e("s_mul_i32 s%d, s%d, %d" % (s_obase, s_rb, 2 * 112 * 1024))
        e("s_lshl_b32 s%d, s%d, 6" % (s_t, s_nb))
        e("s_add_u32 s%d, s%d, s%d" % (s_obase, s_obase, s_t))
        main(True)
        t_ab(False)
        k.vwait("cs")
        BF = 96
        c1 = -2.0 * 0.7978845608028654 * 1.4426950408889634
        e("v_mov_b32 v120, %s" % hx(f32bits(c1 * 0.044715)))
        e("v_mov_b32 v121, %s" % hx(f32bits(c1 * 0.044715)))
        e("v_mov_b32 v122, %s" % hx(f32bits(c1)))
        e("v_mov_b32 v123, %s" % hx(f32bits(c1)))
        e("v_mov_b32 v124, 1.0")
        e("v_mov_b32 v125, 1.0")
        for q in range(4):
            for h2 in range(2):
                e("v_lshlrev_b32 %s, 16, %s" % (vr(BF + 4 * q + 2 * h2), vr(BIR + 2 * q + h2)))
                e("v_and_b32 %s, 0xffff0000, %s" % (vr(BF + 4 * q + 2 * h2 + 1), vr(BIR + 2 * q + h2)))
        for rt in range(2):
            for g in range(4):
                r0 = ACC + 16 * rt + 4 * g
                bq = BF + 4 * g
                ln_T(r0, rt, CSR + 4 * g)
                for p in range(2):
                    e("v_pk_add_f32 %s, %s, %s" % (vr(r0 + 2 * p, 2), vr(r0 + 2 * p, 2), vr(bq + 2 * p, 2)))
                out = []
                for p in range(2):
                    round_pair(out, r0 + 2 * p, r0 + 2 * p + 1, 72 + p)
                for ins in out:
                    e(ins)
                T = 76
                for p in range(2):
                    e("v_pk_mul_f32 %s, %s, %s" % (vr(T + 2 * p, 2), vr(r0 + 2 * p, 2), vr(r0 + 2 * p, 2)))
                for p in range(2):
                    e("v_pk_fma_f32 %s, %s, v[120:121], v[122:123]" % (vr(T + 2 * p, 2), vr(T + 2 * p, 2)))
                for p in range(2):
                    e("v_pk_mul_f32 %s, %s, %s" % (vr(T + 2 * p, 2), vr(T + 2 * p, 2), vr(r0 + 2 * p, 2)))
                for j in range(4):
                    e("v_exp_f32 v%d, v%d" % (T + j, T + j))
                e("s_nop 0")
                for p in range(2):
                    e("v_pk_add_f32 %s, %s, v[124:125]" % (vr(T + 2 * p, 2), vr(T + 2 * p, 2)))
                for j in range(4):
                    e("v_rcp_f32 v%d, v%d" % (T + j, T + j))
                e("s_nop 0")
                for p in range(2):
                    e("v_pk_mul_f32 %s, %s, %s" % (vr(r0 + 2 * p, 2), vr(r0 + 2 * p, 2), vr(T + 2 * p, 2)))
                t0 = 80 + 2 * (g & 1)
                e("v_cvt_pk_bf16_f32 v%d, %s, %s" % (t0, vr(r0), vr(r0 + 1)))
                e("v_cvt_pk_bf16_f32 v%d, %s, %s" % (t0 + 1, vr(r0 + 2), vr(r0 + 3)))
                e("s_add_u32 s%d, s%d, %d" % (s_t, s_obase, rt * 112 * 1024 + (g >> 1) * 1024 + (g & 1) * 512))
                e("buffer_store_dwordx2 v[%d:%d], v7, %s, s%d offen" % (t0, t0 + 1, sr(SO, 4), s_t))
    k.end()
    return k, NTOT, 512, 65536 + 4096


def qkv_first(name, extra):
    N = 3 * D
    NCB = N // 256
    NWG = 32 * NCB
    NTOT = NWG + seg_wgs(extra)
    WST = N * 2
    k = K(name, 128)
    k.prologue(NTOT)
    e = k.e
    SX, SW, SO = 28, 32, 36
    s_rb, s_cb, s_w, s_t, s_wbase, s_t2, s_scale, s_obase, s_T, s_ring = 48, 49, 50, 51, 52, 54, 55, 56, 58, 59
    RING, STP, STL, CST = 65536, 131072, 131072 + 8192, 131072 + 8192 + 512
    magic = (1 << 32) // (8 * NCB) + 1
    e("s_and_b32 s%d, s2, 7" % s_t)
    e("s_mul_i32 s%d, s%d, %d" % (s_t, s_t, 4 * NCB))
    e("s_lshr_b32 s%d, s2, 3" % s_t2)
    e("s_add_u32 s%d, s%d, s%d" % (s_t2, s_t2, s_t))
    e("s_mov_b32 s%d, %s" % (s_t, hx(magic)))
    e("s_mul_hi_u32 s%d, s%d, s%d" % (s_rb, s_t2, s_t))
    e("s_mul_i32 s%d, s%d, %d" % (s_t, s_rb, 8 * NCB))
    e("s_sub_u32 s%d, s%d, s%d" % (s_t2, s_t2, s_t))
    e("s_lshr_b32 s%d, s%d, 3" % (s_cb, s_t2))
    e("s_and_b32 s%d, s%d, 7" % (s_t2, s_t2))
    e("s_lshl_b32 s%d, s%d, 3" % (s_rb, s_rb))
    e("s_add_u32 s%d, s%d, s%d" % (s_rb, s_rb, s_t2))
    e("v_lshrrev_b32 v2, 6, v0")
    e("v_and_b32 v1, 63, v0")
    e("v_lshrrev_b32 v5, 5, v1")
    e("v_readfirstlane_b32 s%d, v2" % s_w)
    e("v_lshlrev_b32 v3, 4, v1")
    e("v_and_b32 v4, 31, v1")
    e("s_waitcnt lgkmcnt(0)")
    lmain = k.newlabel("main")
    e("s_cmp_lt_u32 s2, %d" % NWG)
    e("s_cbranch_scc1 %s" % (lmain if not EXP.get("nomain") else "L_%s_end" % name))
    if EXP.get("noextra"):
        e("s_endpgm")
    emit_wsegs(k, extra, NWG, s_w)
    k.label(lmain)
    k.stamp()
    k.srd(SX, P_AX, 0, S * D * 2)
    k.srd(SW, P_WQKV, 0, D * N * 2)
    e("s_lshl_b32 s%d, s%d, 16" % (s_t, s_rb))
    e("s_lshl_b32 s%d, s%d, 13" % (s_t2, s_w))
    e("s_add_u32 s%d, s%d, s%d" % (s_t, s_t, s_t2))
    e("s_and_b32 s%d, s%d, 1" % (s_t + 8, s_w))
    e("s_lshl_b32 s%d, s%d, 3" % (s_t + 8, s_t + 8))
    for i in range(8):
        e("s_add_u32 s%d, s%d, %d" % (s_t + 9, s_t + 8, i))
        e("v_xor_b32 v6, s%d, v1" % (s_t + 9))
        e("v_lshlrev_b32 v%d, 4, v6" % (64 + i))
    for i in range(8):
        e("s_add_u32 m0, s%d, %d" % (s_t2, i * 1024))
        e("s_add_u32 s%d, s%d, %d" % (s_t + 9, s_t, i * 1024))
        k.vmem("buffer_load_dwordx4 v%d, %s, s%d offen lds" % (64 + i, sr(SX, 4), s_t + 9), "x")
    e("v_lshlrev_b32 v6, 10, v4")
    e("v_and_b32 v9, 15, v1")
    for e_ in range(8):
        e("v_add_u32 v10, %d, v5" % (2 * e_))
        e("v_xor_b32 v10, v10, v9")
        e("v_lshl_add_u32 v%d, v10, 4, v6" % (88 + e_))
    e("s_lshl_b32 s%d, s%d, 3" % (s_T, s_cb))
    e("s_add_u32 s%d, s%d, s%d" % (s_T, s_T, s_w))
    e("s_lshl_b32 s%d, s%d, 6" % (s_wbase, s_T))
    e("s_lshl_b32 s%d, s%d, 13" % (s_ring, s_w))
    e("s_add_u32 s%d, s%d, %d" % (s_ring, s_ring, RING))
    e("v_lshrrev_b32 v7, 2, v1")
    e("v_mul_u32_u24 v7, %d, v7" % WST)
    e("v_and_b32 v8, 3, v1")
    e("v_lshl_add_u32 v7, v8, 4, v7")
    e("v_lshrrev_b32 v8, 4, v1")
    e("v_and_b32 v9, 15, v1")
    e("v_lshrrev_b32 v10, 2, v9")
    e("v_and_b32 v9, 3, v9")
    e("v_lshrrev_b32 v11, 1, v8")
    e("v_lshl_add_u32 v11, v11, 3, v10")
    e("v_lshlrev_b32 v11, 6, v11")
    e("v_and_b32 v8, 1, v8")
    e("v_lshlrev_b32 v8, 5, v8")
    e("v_lshl_add_u32 v8, v9, 3, v8")
    e("v_add3_u32 v8, v8, v11, s%d" % s_ring)

    def wdma(ks):
        e("s_add_u32 m0, s%d, %d" % (s_ring, (ks & 7) * 1024))
        e("s_add_u32 s%d, s%d, %d" % (s_t + 9, s_wbase, ks * 16 * WST))
        k.vmem("buffer_load_dwordx4 v7, %s, s%d offen lds" % (sr(SW, 4), s_t + 9), ("w", ks))

    LA = 6
    for ks in range(LA):
        wdma(ks)
    ACC, FRG, WF = 32, 96, 16
    for r in range(32):
        e("v_mov_b32 v%d, 0" % (ACC + r))
    for r in range(24, 29):
        e("v_mov_b32 v%d, 0" % r)
    e("v_mov_b32 v29, 0x3f803f80")

    def xreads(ks):
        b = FRG + 8 * (ks & 3)
        for rt in range(2):
            e("ds_read_b128 %s, v%d offset:%d" % (vr(b + 4 * rt, 4), 88 + (ks & 7), rt * 32768 + (ks >> 3) * 256))

    def trreads(ks):
        d = WF + 4 * (ks & 1)
        e("ds_read_b64_tr_b16 %s, v8 offset:%d" % (vr(d, 2), (ks & 7) * 1024))
        e("ds_read_b64_tr_b16 %s, v8 offset:%d" % (vr(d + 2, 2), (ks & 7) * 1024 + 256))

    def main(tr):
        sv = getattr(k, "nst", 0)
        k.stamp()
        k.vwait("x")
        e("s_barrier")
        k.stamp()
        xreads(0)
        xreads(1)
        k.vwait(("w", 0))
        trreads(0)
        for ks in range(32):
            if ks + LA < 32:
                wdma(ks + LA)
            if ks + 2 < 32:
                xreads(ks + 2)
            if ks + 1 < 32:
                k.vwait(("w", ks + 1))
                trreads(ks + 1)
            nout = (2 if ks + 2 < 32 else 0) + (2 if ks + 1 < 32 else 0)
            e("s_waitcnt lgkmcnt(%d)" % nout)
            b = FRG + 8 * (ks & 3)
            wf = vr(WF + 4 * (ks & 1), 4)
            for rt in range(2):
                a = ACC + 16 * rt
                xf = vr(b + 4 * rt, 4)
                if tr:
                    e("v_mfma_f32_32x32x16_bf16 %s, %s, %s, %s" % (vr(a, 16), wf, xf, vr(a, 16)))
                else:
                    e("v_mfma_f32_32x32x16_bf16 %s, %s, %s, %s" % (vr(a, 16), xf, wf, vr(a, 16)))
            for j in range(4):
                e("v_dot2_f32_bf16 v28, v%d, v29, v28" % (WF + 4 * (ks & 1) + j))
            ls = k.newlabel("st")
            e("s_cmp_lg_u32 s%d, %d" % (s_w, ks & 7))
            e("s_cbranch_scc1 %s" % ls)
            for rt in range(2):
                for j in range(4):
                    x = b + 4 * rt + j
                    e("v_dot2_f32_bf16 v%d, v%d, v29, v%d" % (24 + 2 * rt, x, 24 + 2 * rt))
                    e("v_dot2_f32_bf16 v%d, v%d, v%d, v%d" % (25 + 2 * rt, x, x, 25 + 2 * rt))
            k.label(ls)
        k.stamp()
        e("s_nop 3")
        e("v_lshlrev_b32 v30, 4, v4")
        e("v_lshl_add_u32 v30, v5, 3, v30")
        e("s_lshl_b32 s%d, s%d, 10" % (s_t, s_w))
        e("s_add_u32 s%d, s%d, %d" % (s_t, s_t, STP))
        e("v_add_u32 v30, s%d, v30" % s_t)
        e("ds_write_b64 v30, v[24:25]")
        e("ds_write_b64 v30, v[26:27] offset:512")
        e("v_mov_b32 v31, v28")
        e("s_nop 1")
        e("v_permlane32_swap_b32 v28, v31")
        e("s_nop 1")
        e("v_add_f32 v28, v28, v31")
        e("v_lshlrev_b32 v31, 2, v4")
        e("s_lshl_b32 s%d, s%d, 7" % (s_t, s_w))
        e("s_add_u32 s%d, s%d, %d" % (s_t, s_t, CST))
        e("v_add_u32 v31, s%d, v31" % s_t)
        e("ds_write_b32 v31, v28")
        e("s_waitcnt lgkmcnt(0)")
        e("s_barrier")
        e("v_lshrrev_b32 v30, 3, v1")
        e("v_and_b32 v31, 7, v1")
        e("v_lshlrev_b32 v31, 10, v31")
        e("v_lshl_add_u32 v31, v30, 4, v31")
        e("s_lshl_b32 s%d, s%d, 7" % (s_t, s_w))
        e("s_add_u32 s%d, s%d, %d" % (s_t, s_t, STP))
        e("v_add_u32 v31, s%d, v31" % s_t)
        e("ds_read_b128 v[64:67], v31")
        e("s_waitcnt lgkmcnt(0)")
        e("v_pk_add_f32 v[24:25], v[64:65], v[66:67]")
        for ctl in ("quad_perm:[1,0,3,2]", "quad_perm:[2,3,0,1]", "row_half_mirror"):
            e("s_nop 1")
            e("v_add_f32_dpp v24, v24, v24 %s row_mask:0xf bank_mask:0xf" % ctl)
            e("v_add_f32_dpp v25, v25, v25 %s row_mask:0xf bank_mask:0xf" % ctl)
        e("v_mul_f32 v27, %s, v24" % hx(f32bits(1.0 / D)))
        e("v_mul_f32 v26, %s, v25" % hx(f32bits(1.0 / D)))
        e("v_fma_f32 v26, -v27, v27, v26")
        e("v_max_f32 v26, 0, v26")
        e("v_cvt_pk_bf16_f32 v24, v27, v26")
        e("v_lshlrev_b32 v27, 16, v24")
        e("v_and_b32 v26, 0xffff0000, v24")
        e("v_add_f32 v26, %s, v26" % hx(f32bits(1e-5)))
        e("v_cvt_pk_bf16_f32 v24, v26, v26")
        e("v_and_b32 v26, 0xffff0000, v24")
        e("v_sqrt_f32 v26, v26")
        e("s_nop 0")
        e("v_cvt_pk_bf16_f32 v24, v26, v26")
        e("v_and_b32 v26, 0xffff0000, v24")
        e("v_rcp_f32 v26, v26")
        e("s_nop 0")
        e("v_mul_f32 v27, v27, v26")
        e("v_sub_f32 v27, 0, v27")
        e("v_lshlrev_b32 v30, 3, v30")
        e("s_lshl_b32 s%d, s%d, 6" % (s_t, s_w))
        e("s_add_u32 s%d, s%d, %d" % (s_t, s_t, STL))
        e("v_add_u32 v30, s%d, v30" % s_t)
        e("ds_write_b64 v30, v[26:27]")
        e("s_waitcnt lgkmcnt(0)")
        e("s_barrier")

    lv = k.newlabel("vpath")
    e("s_cmp_ge_u32 s%d, 32" % s_T)
    e("s_cbranch_scc1 %s" % lv)
    vm_save = list(k.vm)
    e("s_cmp_lt_u32 s%d, 16" % s_T)
    e("s_cselect_b32 s%d, %s, 1.0" % (s_scale, hx(f32bits(QSCALE))))
    k.srd(SO, P_WS, 0, 6 * MB)
    e("s_lshl_b32 s%d, s%d, 17" % (s_obase, s_T))
    e("s_lshl_b32 s%d, s%d, 11" % (s_t, s_rb))
    e("s_add_u32 s%d, s%d, s%d" % (s_obase, s_obase, s_t))
    main(True)
    CSR = 96
    e("v_lshlrev_b32 v30, 3, v4")
    e("v_add_u32 v30, %d, v30" % STL)
    e("ds_read_b64 v[24:25], v30")
    e("ds_read_b64 v[26:27], v30 offset:256")
    e("v_lshlrev_b32 v31, 4, v5")
    e("s_lshl_b32 s%d, s%d, 7" % (s_t, s_w))
    e("s_add_u32 s%d, s%d, %d" % (s_t, s_t, CST))
    e("v_add_u32 v31, s%d, v31" % s_t)
    for g in range(4):
        e("ds_read_b128 %s, v31 offset:%d" % (vr(CSR + 4 * g, 4), 32 * g))
    e("v_lshlrev_b32 v7, 4, v4")
    e("v_lshl_add_u32 v7, v5, 3, v7")
    e("s_waitcnt lgkmcnt(0)")
    for r in range(24, 28):
        e("v_mul_f32 v%d, s%d, v%d" % (r, s_scale, r))
    for rt, (aa, bb) in enumerate(((24, 25), (26, 27))):
        e("v_mov_b32 v%d, v%d" % (64 + 4 * rt, aa))
        e("v_mov_b32 v%d, v%d" % (65 + 4 * rt, aa))
        e("v_mov_b32 v%d, v%d" % (66 + 4 * rt, bb))
        e("v_mov_b32 v%d, v%d" % (67 + 4 * rt, bb))
    for rt in range(2):
        for g in range(4):
            r0 = ACC + 16 * rt + 4 * g
            for p in range(2):
                e("v_pk_mul_f32 %s, %s, %s" % (vr(r0 + 2 * p, 2), vr(r0 + 2 * p, 2), vr(64 + 4 * rt, 2)))
            for p in range(2):
                e("v_pk_fma_f32 %s, %s, %s, %s" % (vr(r0 + 2 * p, 2), vr(CSR + 4 * g + 2 * p, 2), vr(66 + 4 * rt, 2), vr(r0 + 2 * p, 2)))
            t0 = 72 + 2 * ((rt * 4 + g) & 3)
            e("v_cvt_pk_bf16_f32 v%d, %s, %s" % (t0, vr(r0), vr(r0 + 1)))
            e("v_cvt_pk_bf16_f32 v%d, %s, %s" % (t0 + 1, vr(r0 + 2), vr(r0 + 3)))
            e("s_add_u32 s%d, s%d, %d" % (s_t, s_obase, (g >> 1) * 65536 + rt * 1024 + (g & 1) * 512))
            e("buffer_store_dwordx2 v[%d:%d], v7, %s, s%d offen" % (t0, t0 + 1, sr(SO, 4), s_t))
    k.stamp_out(s_w)
    if EXP.get("stamp"):
        k.nst = 1
    e("s_endpgm")
    k.label(lv)
    k.vm = vm_save
    k.srd(SO, P_WS, WS_V, 2 * MB)
    e("s_sub_u32 s%d, s%d, 32" % (s_t, s_T))
    e("s_lshl_b32 s%d, s%d, 17" % (s_obase, s_t))
    e("s_lshl_b32 s%d, s%d, 11" % (s_t, s_rb))
    e("s_add_u32 s%d, s%d, s%d" % (s_obase, s_obase, s_t))
    main(False)
    e("v_bfe_u32 v7, v1, 4, 1")
    e("v_lshlrev_b32 v7, 16, v7")
    e("v_lshl_add_u32 v7, v5, 8, v7")
    e("v_and_b32 v6, 15, v1")
    e("v_lshl_add_u32 v7, v6, 4, v7")
    e("v_lshlrev_b32 v30, 5, v5")
    e("v_add_u32 v30, %d, v30" % STL)
    AB = 64
    for rt in range(2):
        for g in range(4):
            for h2 in range(2):
                e("ds_read_b128 %s, v30 offset:%d" % (vr(AB + 32 * rt + 8 * g + 4 * h2, 4), (rt * 32 + 8 * g) * 8 + 16 * h2))
    e("s_waitcnt lgkmcnt(0)")
    for rt in range(2):
        a = ACC + 16 * rt
        for r in range(16):
            ab = AB + 32 * rt + 2 * r
            e("v_mul_f32 %s, %s, %s" % (vr(a + r), vr(a + r), vr(ab)))
            e("v_fma_f32 %s, %s, v28, %s" % (vr(a + r), vr(ab + 1), vr(a + r)))
        for half in range(2):
            t0 = 12 + 4 * half
            for j in range(4):
                r0 = a + 8 * half + 2 * j
                e("v_cvt_pk_bf16_f32 v%d, %s, %s" % (t0 + j, vr(r0), vr(r0 + 1)))
            e("s_add_u32 s%d, s%d, %d" % (s_t, s_obase, (rt * 2 + half) * 512))
            e("buffer_store_dwordx4 v[%d:%d], v7, %s, s%d offen" % (t0, t0 + 3, sr(SO, 4), s_t))
            e("s_nop 1")
    k.end()
    return k, NTOT, 512, CST + 1024


def nolds(k, t):
    if not EXP.get('nolds'):
        k.e(t)


def attention(name):
    k = K(name, 128)
    k.prologue(256)
    SQ, SK, SV, SO = 28, 32, 36, 40
    s_h, s_qc, s_w, s_t, s_cnt = 48, 49, 50, 51, 52
    ONES = 131072
    k.e("s_and_b32 s%d, s2, 31" % s_h)
    k.e("s_lshr_b32 s%d, s2, 5" % s_qc)
    k.e("v_lshrrev_b32 v2, 6, v0")
    k.e("v_and_b32 v1, 63, v0")
    k.e("s_nop 0")
    k.e("v_readfirstlane_b32 s%d, v2" % s_w)
    k.e("s_waitcnt lgkmcnt(0)")
    k.srd(SQ, P_WS, WS_Q, 2 * MB)
    k.srd(SK, P_WS, WS_K, 2 * MB)
    k.srd(SV, P_WS, WS_V, 2 * MB)
    k.srd(SO, P_WS, WS_O, 2 * MB)
    k.e("v_lshlrev_b32 v3, 4, v1")
    k.e("s_lshl_b32 s%d, s%d, 16" % (s_t, s_h))
    k.e("s_lshl_b32 s%d, s%d, 13" % (s_cnt, s_qc))
    k.e("s_add_u32 s%d, s%d, s%d" % (s_t, s_t, s_cnt))
    k.e("s_lshl_b32 s%d, s%d, 10" % (s_cnt, s_w))
    k.e("s_add_u32 s%d, s%d, s%d" % (s_t, s_t, s_cnt))
    QF = 28
    k.e("buffer_load_dwordx4 %s, v3, %s, s%d offen" % (vr(QF, 4), sr(SQ, 4), s_t))
    k.e("s_lshl_b32 s%d, s%d, 16" % (s_t, s_h))
    k.e("s_lshl_b32 s%d, s%d, 13" % (s_cnt, s_w))
    k.e("s_add_u32 s%d, s%d, s%d" % (s_t, s_t, s_cnt))
    for which, srd_, base in ((0, SK, 0), (1, SV, 65536)):
        for q in range(2):
            k.e("s_add_u32 m0, s%d, %d" % (s_cnt, base + q * 4096))
            k.e("s_add_u32 s%d, s%d, %d" % (s_cnt + 1, s_t, q * 4096))
            for i in range(4):
                k.e("buffer_load_dwordx4 v3, %s, s%d offen offset:%d lds" % (sr(srd_, 4), s_cnt + 1, i * 1024))
    k.e("v_mov_b32 v8, 0x3f803f80")
    k.e("v_mov_b32 v9, 0x3f803f80")
    k.e("v_lshlrev_b32 v12, 3, v0")
    k.e("v_add_u32 v12, %d, v12" % ONES)
    k.e("ds_write_b64 v12, v[8:9]")
    k.e("v_lshrrev_b32 v5, 5, v1")
    k.e("v_and_b32 v13, 15, v1")
    k.e("v_lshlrev_b32 v13, 4, v13")
    k.e("v_lshl_add_u32 v13, v5, 8, v13")
    k.e("v_add_u32 v14, 65536, v13")
    k.e("v_add_u32 v15, %d, v13" % ONES)
    k.e("v_and_b32 v16, 16, v1")
    k.e("v_cmp_eq_u32 vcc, 0, v16")
    k.e("v_mov_b32 v16, 0")
    k.e("v_mov_b32 v19, 4096")
    k.e("s_nop 1")
    k.e("v_cndmask_b32 v17, v16, v19, vcc")
    k.e("v_cndmask_b32 v18, v15, v14, vcc")
    k.e("v_mov_b32 v19, %s" % hx(f32bits(2.0 ** -90)))

    MX = 24
    S4 = [32, 48, 64, 80]
    KF = [96, 100, 104, 108]
    NEG = 32
    SA, SB_ = 48, 64
    OA = 80
    PK = 96
    KF0, KF1 = 104, 108
    VF = 112
    s_fb = 54
    KMX = ONES + 4096
    k.e("s_waitcnt vmcnt(8) lgkmcnt(0)")
    k.e("s_barrier")
    k.e("s_lshl_b32 s%d, s%d, 13" % (s_t, s_w))
    k.e("v_add_u32 v22, s%d, v3" % s_t)
    for j in range(8):
        k.e("ds_read_b128 %s, v22 offset:%d" % (vr(32 + 4 * j, 4), j * 1024))
    k.e("v_mov_b32 v24, 0")
    for j in range(8):
        k.e("s_waitcnt lgkmcnt(%d)" % (7 - j))
        k.e("v_mov_b32 v%d, 0" % (64 + j))
        for i in range(4):
            k.e("v_dot2_f32_bf16 v%d, v%d, v%d, v%d" % (64 + j, 32 + 4 * j + i, 32 + 4 * j + i, 64 + j))
    k.e("v_mov_b32 v25, 0")
    for i in range(4):
        k.e("v_dot2_f32_bf16 v25, v%d, v%d, v25" % (QF + i, QF + i))
    k.e("s_nop 2")
    k.e("v_max3_f32 v24, v64, v65, v66")
    k.e("v_max3_f32 v26, v67, v68, v69")
    k.e("v_max3_f32 v24, v24, v70, v71")
    k.e("v_max_f32 v24, v24, v26")
    for ctl in ("quad_perm:[1,0,3,2]", "quad_perm:[2,3,0,1]", "row_half_mirror", "row_mirror"):
        k.e("s_nop 1")
        k.e("v_max_f32_dpp v24, v24, v24 %s row_mask:0xf bank_mask:0xf" % ctl)
    k.e("v_lshrrev_b32 v26, 4, v1")
    k.e("v_lshlrev_b32 v26, 2, v26")
    k.e("s_lshl_b32 s%d, s%d, 4" % (s_t, s_w))
    k.e("s_add_u32 s%d, s%d, %d" % (s_t, s_t, KMX))
    k.e("v_add_u32 v26, s%d, v26" % s_t)
    k.e("ds_write_b32 v26, v24")
    k.e("v_mov_b32 v26, v25")
    k.e("s_nop 1")
    k.e("v_permlane32_swap_b32 v25, v26")
    k.e("s_nop 1")
    k.e("v_add_f32 v25, v25, v26")
    k.e("s_waitcnt vmcnt(0) lgkmcnt(0)")
    k.e("s_barrier")
    k.e("v_mov_b32 v26, %d" % KMX)
    for j in range(8):
        k.e("ds_read_b128 %s, v26 offset:%d" % (vr(32 + 4 * j, 4), 16 * j))
    k.e("s_waitcnt lgkmcnt(0)")
    for c in range(4):
        k.e("v_max3_f32 v%d, v%d, v%d, v%d" % (64 + c, 32 + c, 36 + c, 40 + c))
        k.e("v_max3_f32 v%d, v%d, v%d, v%d" % (64 + c, 64 + c, 44 + c, 48 + c))
        k.e("v_max3_f32 v%d, v%d, v%d, v%d" % (64 + c, 64 + c, 52 + c, 56 + c))
        k.e("v_max_f32 v%d, v%d, v%d" % (64 + c, 64 + c, 60 + c))
    k.e("v_max_f32 v64, v64, v65")
    k.e("v_max_f32 v66, v66, v67")
    k.e("v_add_f32 v64, v64, v66")
    k.e("v_mul_f32 v24, v25, v64")
    k.e("v_sqrt_f32 v24, v24")
    k.e("s_nop 0")
    k.e("v_fma_f32 v24, v24, %s, %s" % ("1.0", "0.5"))
    k.e("v_mul_f32 v24, %s, v24" % hx(f32bits(-1.001)))
    k.e("s_mov_b32 s%d, 0" % s_fb)
    lp2 = k.newlabel("pass2")
    k.label(lp2)
    for j in range(16):
        k.e("v_mov_b32 v%d, v24" % (NEG + j))
    for j in range(16):
        k.e("v_mov_b32 v%d, 0" % (OA + j))
    k.e("v_mov_b32 v22, v3")
    k.e("v_mov_b32 v23, v18")
    k.e("ds_read_b128 %s, v22" % vr(KF0, 4))
    k.e("ds_read_b128 %s, v22 offset:1024" % vr(KF1, 4))
    for j in range(4):
        k.e("ds_read_b128 %s, v23 offset:%d" % (vr(VF + 4 * j, 4), 512 * j))
    k.e("s_waitcnt lgkmcnt(5)")
    k.e("v_mfma_f32_32x32x16_bf16 %s, %s, %s, %s" % (vr(SA, 16), vr(KF0, 4), vr(QF, 4), vr(NEG, 16)))
    k.e("s_mov_b32 s%d, 0" % s_cnt)
    k.e("s_nop 7")
    k.e("s_nop 3")

    def softmax_pv(Sx, vf0, vf1):
        for j in range(16):
            k.e("v_exp_f32 %s, %s" % (vr(Sx + j), vr(Sx + j)))
            if j % 2 == 1 and j >= 3:
                k.e("v_cvt_pk_bf16_f32 %s, %s, %s" % (vr(PK + (j - 3) // 2), vr(Sx + j - 3), vr(Sx + j - 2)))
        k.e("v_mfma_f32_32x32x16_bf16 %s, %s, %s, %s" % (vr(OA, 16), vr(vf0, 4), vr(PK, 4), vr(OA, 16)))
        k.e("v_cvt_pk_bf16_f32 %s, %s, %s" % (vr(PK + 7), vr(Sx + 14), vr(Sx + 15)))
        k.e("s_nop 1")
        k.e("v_mfma_f32_32x32x16_bf16 %s, %s, %s, %s" % (vr(OA, 16), vr(vf1, 4), vr(PK + 4, 4), vr(OA, 16)))

    l2 = k.newlabel("p2")
    k.label(l2)
    for half in range(2):
        ko = half * 2048
        k.e("s_waitcnt lgkmcnt(0)")
        k.e("v_mfma_f32_32x32x16_bf16 %s, %s, %s, %s" % (vr(SB_, 16), vr(KF1, 4), vr(QF, 4), vr(NEG, 16)))
        k.e("ds_read_b128 %s, v22 offset:%d" % (vr(KF0, 4), ko + 2048))
        k.e("ds_read_b128 %s, v22 offset:%d" % (vr(KF1, 4), ko + 3072))
        softmax_pv(SA, VF, VF + 4)
        if half == 1:
            k.e("v_add_u32 v23, v23, v17")
            vn = 0
        else:
            vn = 2048
        k.e("ds_read_b128 %s, v23 offset:%d" % (vr(VF, 4), vn))
        k.e("ds_read_b128 %s, v23 offset:%d" % (vr(VF + 4, 4), vn + 512))
        k.e("s_waitcnt lgkmcnt(2)")
        k.e("v_mfma_f32_32x32x16_bf16 %s, %s, %s, %s" % (vr(SA, 16), vr(KF0, 4), vr(QF, 4), vr(NEG, 16)))
        if half == 1:
            k.e("v_add_u32 v22, 4096, v22")
            k.e("s_add_u32 s%d, s%d, 1" % (s_cnt, s_cnt))
            k.e("s_cmp_lt_u32 s%d, 16" % s_cnt)
        softmax_pv(SB_, VF + 8, VF + 12)
        k.e("ds_read_b128 %s, v23 offset:%d" % (vr(VF + 8, 4), vn + 1024))
        k.e("ds_read_b128 %s, v23 offset:%d" % (vr(VF + 12, 4), vn + 1536))
    k.e("s_cbranch_scc1 %s" % l2)
    k.e("s_waitcnt lgkmcnt(0)")
    k.e("s_nop 15")
    k.e("s_nop 3")
    ldone = k.newlabel("ok")
    k.e("v_cmp_nge_f32 vcc, %s, %s" % (vr(OA + 8), "v16" if False else "v19"))
    k.e("s_cmp_lg_u32 s%d, 0" % s_fb)
    k.e("s_cbranch_scc1 %s" % ldone)
    k.e("s_cbranch_vccz %s" % ldone) if not EXP.get("force_fb") else None
    k.e("s_mov_b32 s%d, 1" % s_fb)
    k.e("v_mov_b32 v22, v3")
    for j in range(4):
        k.e("v_mov_b32 v%d, 0xff800000" % (MX + j))
    for j in range(4):
        k.e("ds_read_b128 %s, v22 offset:%d" % (vr(KF[j], 4), j * 1024))
    k.e("s_waitcnt lgkmcnt(2)")
    k.e("v_mfma_f32_32x32x16_bf16 %s, %s, %s, 0" % (vr(S4[0], 16), vr(KF[0], 4), vr(QF, 4)))
    k.e("v_mfma_f32_32x32x16_bf16 %s, %s, %s, 0" % (vr(S4[1], 16), vr(KF[1], 4), vr(QF, 4)))
    k.e("ds_read_b128 %s, v22 offset:4096" % vr(KF[0], 4))
    k.e("ds_read_b128 %s, v22 offset:5120" % vr(KF[1], 4))
    k.e("s_mov_b32 s%d, 0" % s_cnt)

    def maxes(Sx):
        for j in range(8):
            k.e("v_max3_f32 v%d, v%d, %s, %s" % (MX + (j & 3), MX + (j & 3), vr(Sx + 2 * j), vr(Sx + 2 * j + 1)))

    l1 = k.newlabel("p1")
    k.label(l1)
    k.e("s_waitcnt lgkmcnt(2)")
    k.e("v_mfma_f32_32x32x16_bf16 %s, %s, %s, 0" % (vr(S4[2], 16), vr(KF[2], 4), vr(QF, 4)))
    k.e("v_mfma_f32_32x32x16_bf16 %s, %s, %s, 0" % (vr(S4[3], 16), vr(KF[3], 4), vr(QF, 4)))
    k.e("ds_read_b128 %s, v22 offset:6144" % vr(KF[2], 4))
    k.e("ds_read_b128 %s, v22 offset:7168" % vr(KF[3], 4))
    k.e("s_add_u32 s%d, s%d, 1" % (s_cnt, s_cnt))
    k.e("s_cmp_lt_u32 s%d, 16" % s_cnt)
    k.e("v_add_u32 v22, 4096, v22")
    k.e("s_nop 4")
    maxes(S4[0])
    maxes(S4[1])
    k.e("s_waitcnt lgkmcnt(2)")
    k.e("v_mfma_f32_32x32x16_bf16 %s, %s, %s, 0" % (vr(S4[0], 16), vr(KF[0], 4), vr(QF, 4)))
    k.e("v_mfma_f32_32x32x16_bf16 %s, %s, %s, 0" % (vr(S4[1], 16), vr(KF[1], 4), vr(QF, 4)))
    k.e("ds_read_b128 %s, v22 offset:4096" % vr(KF[0], 4))
    k.e("ds_read_b128 %s, v22 offset:5120" % vr(KF[1], 4))
    maxes(S4[2])
    maxes(S4[3])
    k.e("s_cbranch_scc1 %s" % l1)
    k.e("v_max3_f32 v24, v24, v25, v26")
    k.e("v_max_f32 v24, v24, v27")
    k.e("v_mov_b32 v25, v24")
    k.e("s_nop 1")
    k.e("v_permlane32_swap_b32 v24, v25")
    k.e("s_nop 1")
    k.e("v_max_f32 v24, v24, v25")
    k.e("v_sub_f32 v24, 0, v24")
    k.e("s_waitcnt lgkmcnt(0)")
    k.e("s_nop 7")
    k.e("s_branch %s" % lp2)
    k.label(ldone)
    k.e("v_rcp_f32 v24, %s" % vr(OA + 8))
    k.e("s_nop 0")
    for j in range(8):
        k.e("v_mul_f32 %s, %s, v24" % (vr(OA + j), vr(OA + j)))
    for j in range(4):
        k.e("v_cvt_pk_bf16_f32 %s, %s, %s" % (vr(PK + j), vr(OA + 2 * j), vr(OA + 2 * j + 1)))
    k.e("v_and_b32 v24, 31, v1")
    k.e("v_lshlrev_b32 v24, 4, v24")
    k.e("v_lshl_add_u32 v24, v5, 3, v24")
    k.e("s_lshl_b32 s%d, s%d, 18" % (s_t, s_qc))
    k.e("s_lshl_b32 s%d, s%d, 15" % (s_cnt, s_w))
    k.e("s_add_u32 s%d, s%d, s%d" % (s_t, s_t, s_cnt))
    k.e("s_lshl_b32 s%d, s%d, 10" % (s_cnt, s_h))
    k.e("s_add_u32 s%d, s%d, s%d" % (s_t, s_t, s_cnt))
    k.e("buffer_store_dwordx2 %s, v24, %s, s%d offen" % (vr(PK, 2), sr(SO, 4), s_t))
    k.e("buffer_store_dwordx2 %s, v24, %s, s%d offen offset:512" % (vr(PK + 2, 2), sr(SO, 4), s_t))
    k.e("s_waitcnt lgkmcnt(0)")
    k.end()
    return k, 256, 512, 131072 + 8192 + 256


def gemm64(name, aoff, Kdim, woff, bias, roff, dst, stoff, res_rm=False):
    KS = Kdim // 16
    KSW = KS // 4
    WIN = min(KSW, 14)
    final = dst[0] == 'arg'
    k = K(name, 128, WIN * 16)
    k.prologue(256)
    SA_, SW, SR, SO, SB, SS = 28, 32, 36, 40, 44, 56
    s_rb, s_cb, s_w, s_t, s_t2, s_abase, s_wbase, s_xo = 48, 49, 50, 51, 52, 53, 54, 55
    k.e("s_and_b32 s%d, s2, 7" % s_t)
    k.e("s_lshl_b32 s%d, s%d, 2" % (s_rb, s_t))
    k.e("s_lshr_b32 s%d, s2, 6" % s_t)
    k.e("s_add_u32 s%d, s%d, s%d" % (s_rb, s_rb, s_t))
    k.e("s_lshr_b32 s%d, s2, 3" % s_cb)
    k.e("s_and_b32 s%d, s%d, 7" % (s_cb, s_cb))
    k.e("v_lshrrev_b32 v2, 6, v0")
    k.e("v_and_b32 v1, 63, v0")
    k.e("v_lshlrev_b32 v3, 4, v1")
    k.e("v_readfirstlane_b32 s%d, v2" % s_w)
    k.e("s_waitcnt lgkmcnt(0)")
    k.srd(SA_, P_WS, aoff, S * Kdim * 2)
    k.srd(SW, P_WS, woff, Kdim * D * 2)
    if res_rm:
        k.srd(SR, P_AX, 0, S * D * 2)
    else:
        k.srd(SR, P_WS, roff, S * D * 2)
    src_srd(k, SO, dst, S * D * 2)
    if bias is not None:
        k.srd(SB, bias, 0, D * 2)
    if not final:
        k.srd(SS, P_WS, stoff, S * 256)
    k.e("s_mul_i32 s%d, s%d, %d" % (s_t, s_w, KSW * 1024))
    k.e("s_mul_i32 s%d, s%d, %d" % (s_abase, s_rb, 2 * KS * 1024))
    k.e("s_add_u32 s%d, s%d, s%d" % (s_abase, s_abase, s_t))
    k.e("s_mul_i32 s%d, s%d, %d" % (s_wbase, s_cb, 2 * KS * 1024))
    k.e("s_add_u32 s%d, s%d, s%d" % (s_wbase, s_wbase, s_t))
    k.e("v_lshrrev_b32 v15, 5, v1")
    k.e("v_and_b32 v14, 31, v1")
    k.e("v_lshlrev_b32 v16, 4, v14")
    k.e("v_lshl_add_u32 v16, v15, 3, v16")
    k.e("s_lshr_b32 s%d, s%d, 1" % (s_t, s_w))
    k.e("s_lshl_b32 s%d, s%d, 1" % (s_t2, s_rb))
    k.e("s_add_u32 s%d, s%d, s%d" % (s_t, s_t, s_t2))
    k.e("s_lshl_b32 s%d, s%d, 15" % (s_xo, s_t))
    k.e("s_lshl_b32 s%d, s%d, 12" % (s_t2, s_cb))
    k.e("s_add_u32 s%d, s%d, s%d" % (s_xo, s_xo, s_t2))
    k.e("s_and_b32 s%d, s%d, 1" % (s_t2, s_w))
    k.e("s_lshl_b32 s%d, s%d, 11" % (s_t2, s_t2))
    k.e("s_add_u32 s%d, s%d, s%d" % (s_xo, s_xo, s_t2))

    def loads(s):
        slot = (s % WIN) * 16
        for t in range(2):
            k.e("s_add_u32 s%d, s%d, %d" % (s_t, s_abase, (t * KS + s) * 1024))
            k.vmem("buffer_load_dwordx4 %s, v3, %s, s%d offen" % (ar(slot + 4 * t, 4), sr(SA_, 4), s_t), ("m", s))
        for t in range(2):
            k.e("s_add_u32 s%d, s%d, %d" % (s_t, s_wbase, (t * KS + s) * 1024))
            k.vmem("buffer_load_dwordx4 %s, v3, %s, s%d offen" % (ar(slot + 8 + 4 * t, 4), sr(SW, 4), s_t), ("m", s))

    NW0 = min(WIN, EXP.get("nw0", 6))
    for s in range(NW0):
        loads(s)
    RX = 40
    if res_rm:
        k.e("s_lshr_b32 s%d, s%d, 1" % (s_t, s_w))
        k.e("s_lshl_b32 s%d, s%d, 5" % (s_t, s_t))
        k.e("s_lshl_b32 s%d, s%d, 6" % (s_t2, s_rb))
        k.e("s_add_u32 s%d, s%d, s%d" % (s_t, s_t, s_t2))
        k.e("v_add_u32 v19, s%d, v14" % s_t)
        k.e("v_lshlrev_b32 v19, 10, v19")
        k.e("v_lshl_add_u32 v19, v15, 3, v19")
        k.e("s_lshl_b32 s%d, s%d, 7" % (s_t, s_cb))
        k.e("s_and_b32 s%d, s%d, 1" % (s_t2, s_w))
        k.e("s_lshl_b32 s%d, s%d, 6" % (s_t2, s_t2))
        k.e("s_add_u32 s%d, s%d, s%d" % (s_t, s_t, s_t2))
        for g in range(4):
            k.vmem("buffer_load_dwordx2 %s, v19, %s, s%d offen offset:%d" % (vr(RX + 2 * g, 2), sr(SR, 4), s_t, 16 * g), "res")
    else:
        for g in range(4):
            k.vmem("buffer_load_dwordx2 %s, v16, %s, s%d offen offset:%d" % (vr(RX + 2 * g, 2), sr(SR, 4), s_xo, 512 * g), "res")
    if bias is not None:
        k.e("s_lshl_b32 s%d, s%d, 7" % (s_t, s_cb))
        k.e("s_and_b32 s%d, s%d, 1" % (s_t2, s_w))
        k.e("s_lshl_b32 s%d, s%d, 6" % (s_t2, s_t2))
        k.e("s_add_u32 s%d, s%d, s%d" % (s_t, s_t, s_t2))
        k.e("v_lshlrev_b32 v17, 3, v15")
        for g in range(4):
            k.vmem("buffer_load_dwordx2 %s, v17, %s, s%d offen offset:%d" % (vr(48 + 2 * g, 2), sr(SB, 4), s_t, 16 * g), "res")
    ACC = 64
    for r in range(64):
        k.e("v_mov_b32 v%d, 0" % (ACC + r))
    issued = NW0
    for s in range(KSW):
        k.vwait(("m", s))
        slot = (s % WIN) * 16
        for rt in range(2):
            for ct in range(2):
                a = ACC + 16 * (2 * rt + ct)
                k.e("v_mfma_f32_32x32x16_bf16 %s, %s, %s, %s" % (vr(a, 16), ar(slot + 8 + 4 * ct, 4), ar(slot + 4 * rt, 4), vr(a, 16)))
        nn = 0
        while issued < KSW and issued - WIN <= s and issued <= s + EXP.get("nw0", 6) + 0 and nn < 2:
            loads(issued)
            issued += 1
            nn += 1
    k.e("s_lshl_b32 s%d, s%d, 12" % (s_t2, s_w))
    k.e("v_add_u32 v4, s%d, v3" % s_t2)
    k.e("s_lshl_b32 s%d, s%d, 14" % (s_t2, s_w))
    k.e("v_add_u32 v6, s%d, v3" % s_t2)
    k.e("s_nop 15")
    for t in range(4):
        for q in range(4):
            k.e("ds_write_b128 v4, %s offset:%d" % (vr(ACC + 16 * t + 4 * q, 4), t * 16384 + q * 1024))
    k.e("s_waitcnt lgkmcnt(0)")
    k.e("s_barrier")
    for w2 in range(4):
        for q in range(4):
            k.e("ds_read_b128 %s, v6 offset:%d" % (vr(ACC + 16 * w2 + 4 * q, 4), w2 * 4096 + q * 1024))
    if final:
        k.e("s_lshr_b32 s%d, s%d, 1" % (s_t, s_w))
        k.e("s_lshl_b32 s%d, s%d, 5" % (s_t, s_t))
        k.e("s_lshl_b32 s%d, s%d, 6" % (s_t2, s_rb))
        k.e("s_add_u32 s%d, s%d, s%d" % (s_t, s_t, s_t2))
        k.e("v_add_u32 v18, s%d, v14" % s_t)
        k.e("v_lshlrev_b32 v18, 10, v18")
        k.e("v_lshl_add_u32 v18, v15, 3, v18")
        k.e("s_lshl_b32 s%d, s%d, 7" % (s_xo, s_cb))
        k.e("s_and_b32 s%d, s%d, 1" % (s_t2, s_w))
        k.e("s_lshl_b32 s%d, s%d, 6" % (s_t2, s_t2))
        k.e("s_add_u32 s%d, s%d, s%d" % (s_xo, s_xo, s_t2))
    else:
        k.e("v_mov_b32 v18, v16")
        k.e("v_mov_b32 v7, 0x3f803f80")
        k.e("v_mov_b32 v8, 0")
        k.e("v_mov_b32 v9, 0")
    k.e("s_waitcnt vmcnt(0) lgkmcnt(0)")
    for r in range(0, 16, 2):
        k.e("v_pk_add_f32 %s, %s, %s" % (vr(ACC + r, 2), vr(ACC + r, 2), vr(ACC + 16 + r, 2)))
        k.e("v_pk_add_f32 %s, %s, %s" % (vr(ACC + 32 + r, 2), vr(ACC + 32 + r, 2), vr(ACC + 48 + r, 2)))
    for r in range(0, 16, 2):
        k.e("v_pk_add_f32 %s, %s, %s" % (vr(ACC + r, 2), vr(ACC + r, 2), vr(ACC + 32 + r, 2)))
    for g in range(4):
        r0 = ACC + 4 * g
        out = []
        for p in range(2):
            round_pair(out, r0 + 2 * p, r0 + 2 * p + 1, 56 + p)
        if bias is not None:
            for p in range(2):
                out.append("v_lshlrev_b32 v58, 16, %s" % vr(48 + 2 * g + p))
                out.append("v_and_b32 v59, 0xffff0000, %s" % vr(48 + 2 * g + p))
                out.append("v_pk_add_f32 %s, %s, v[58:59]" % (vr(r0 + 2 * p, 2), vr(r0 + 2 * p, 2)))
            for p in range(2):
                round_pair(out, r0 + 2 * p, r0 + 2 * p + 1, 56 + p)
        for p in range(2):
            out.append("v_lshlrev_b32 v58, 16, %s" % vr(RX + 2 * g + p))
            out.append("v_and_b32 v59, 0xffff0000, %s" % vr(RX + 2 * g + p))
            out.append("v_pk_add_f32 %s, %s, v[58:59]" % (vr(r0 + 2 * p, 2), vr(r0 + 2 * p, 2)))
        for ins in out:
            k.e(ins)
        o = 20 + 2 * g
        k.e("v_cvt_pk_bf16_f32 v%d, %s, %s" % (o, vr(r0), vr(r0 + 1)))
        k.e("v_cvt_pk_bf16_f32 v%d, %s, %s" % (o + 1, vr(r0 + 2), vr(r0 + 3)))
        k.e("buffer_store_dwordx2 v[%d:%d], v18, %s, s%d offen offset:%d" % (o, o + 1, sr(SO, 4), s_xo, (16 if final else 512) * g))
        if not final:
            for p in range(2):
                k.e("v_dot2_f32_bf16 v8, v%d, v7, v8" % (o + p))
                k.e("v_dot2_f32_bf16 v9, v%d, v%d, v9" % (o + p, o + p))
    if not final:
        k.e("v_mov_b32 v10, v16")
        k.e("s_lshr_b32 s%d, s%d, 1" % (s_t, s_w))
        k.e("s_lshl_b32 s%d, s%d, 1" % (s_t2, s_rb))
        k.e("s_add_u32 s%d, s%d, s%d" % (s_t, s_t, s_t2))
        k.e("s_lshl_b32 s%d, s%d, 9" % (s_t, s_t))
        k.e("s_lshl_b32 s%d, s%d, 16" % (s_t2, s_cb))
        k.e("s_add_u32 s%d, s%d, s%d" % (s_t, s_t, s_t2))
        k.e("s_and_b32 s%d, s%d, 1" % (s_t2, s_w))
        k.e("s_lshl_b32 s%d, s%d, 15" % (s_t2, s_t2))
        k.e("s_add_u32 s%d, s%d, s%d" % (s_t, s_t, s_t2))
        k.e("buffer_store_dwordx2 v[8:9], v10, %s, s%d offen" % (sr(SS, 4), s_t))
    k.end()
    return k, 256, 256, 65536


def build():
    ks = []
    LG = lngemm8
    ks.append(qkv_first("qkv1_kernel", SEG_ALL))
    ks.append(attention("attn_kernel"))
    ks.append(gemm64("wo1_kernel", WS_O, D, WS_WO, None, WS_X0, ('ws', WS_X1), WS_ST1, True))
    ks.append(LG("ffn1a_kernel", WS_X1, WS_ST1, WS_W1, WS_CS1, F, 'ffn1'))
    ks.append(gemm64("ffn2a_kernel", WS_H, F, WS_W2, P_B2, WS_X1, ('ws', WS_X2), WS_ST2))
    ks.append(LG("qkv2_kernel", WS_X2, WS_ST2, WS_WQ, WS_CSQ, 3 * D, 'qkv'))
    ks.append(gemm64("wo2_kernel", WS_O, D, WS_WO, None, WS_X2, ('ws', WS_X3), WS_ST3))
    ks.append(LG("ffn1b_kernel", WS_X3, WS_ST3, WS_W1, WS_CS1, F, 'ffn1'))
    ks.append(gemm64("ffn2b_kernel", WS_H, F, WS_W2, P_B2, WS_X3, ('arg', P_OUT), None))
    byname = {k.name: (k, nwg, blk, lds) for k, nwg, blk, lds in ks}
    order = ["qkv1_kernel", "attn_kernel", "wo1_kernel", "ffn1a_kernel", "ffn2a_kernel",
             "qkv2_kernel", "attn_kernel", "wo2_kernel", "ffn1b_kernel", "ffn2b_kernel"]
    out = []
    for n in order:
        k, nwg, blk, lds = byname[n]
        out.append("; @launch kernel=%s grid=(%d,1,1) block=(%d,1,1) lds=%d" % (n, nwg, blk, lds))
    out.append('.amdgcn_target "amdgcn-amd-amdhsa--gfx950"')
    out.append(".text")
    for k, _, _, _ in ks:
        out += k.lines
    out.append('.section .rodata,"a"')
    for k, _, _, _ in ks:
        out.append(".p2align 6")
        out.append(k.desc())
    return "\n".join(out) + "\n"


if __name__ == "__main__":
    path = sys.argv[1] if len(sys.argv) > 1 else "cdna_kernels/%s.s" % NAME
    open(path, "w").write(build())
    print("wrote", path)
```
